```python
import torch

def _softmax(x, axis=-1):
    return torch.softmax(x, dim=axis)

def _gelu(x):
    return torch.nn.functional.gelu(x, approximate='tanh')

def _silu(x):
    return torch.nn.functional.silu(x)

def _sigmoid(x):
    return torch.sigmoid(x)

def _layernorm(x, axis=-1, eps=1e-05):
    m = x.mean(dim=axis, keepdim=True)
    v = x.var(dim=axis, keepdim=True, unbiased=False)
    return (x - m) / torch.sqrt(v + eps)

def _scatter_add(tgt, idx, src, axis=0):
    return tgt.clone().index_add_(axis, idx, src)

def _segment_sum(src, seg, n):
    out = torch.zeros((n,) + src.shape[1:], dtype=src.dtype)
    return out.index_add_(0, seg, src)

def _pad(x, pw):
    flat = tuple((v for pair in reversed(pw) for v in pair))
    return torch.nn.functional.pad(x, flat)
kernel_name = 'gated_mix__sliding_block__memory_aug_recurrent_mem_tr__prompt'

def setup_inputs():

    _w = lambda a: (lambda t: t.to(torch.bfloat16) if t.is_floating_point() else t)(torch.as_tensor(a))

    def _A_setup():
        B, S, D = (1, 2048, 512)
        return {'x': _w((lambda *s: torch.randn(*s, dtype=torch.bfloat16) * 0.05)(B, S, D)), 'wqkv': _w((lambda *s: torch.randn(*s, dtype=torch.bfloat16) * 1.6)(D, 3 * D)), 'wo': _w((lambda *s: torch.randn(*s, dtype=torch.bfloat16) * 0.05)(D, D))}
    _A_in = _A_setup()

    def _B_setup():
        B, S, Dm = (1, 2048, 512)
        H, Dh = (32, 128)
        M, seg = (8, 32)
        seg = min(seg, S)
        S = S // seg * seg
        return {'x': _w((lambda *s: torch.randn(*s, dtype=torch.bfloat16) * 0.05)(B, S, Dm)), 'mem0': _w((lambda *s: torch.randn(*s, dtype=torch.bfloat16) * 1.6)(B, M, Dm)), 'Wq': _w((lambda *s: torch.randn(*s, dtype=torch.bfloat16) * 0.8)(Dm, H, Dh) * Dm ** (-0.5)), 'Wk': _w((lambda *s: torch.randn(*s, dtype=torch.bfloat16) * 0.8)(Dm, H, Dh) * Dm ** (-0.5)), 'Wv': _w((lambda *s: torch.randn(*s, dtype=torch.bfloat16) * 1.6)(Dm, H, Dh) * Dm ** (-0.5)), 'Wo': _w((lambda *s: torch.randn(*s, dtype=torch.bfloat16) * 1.6)(H, Dh, Dm) * (H * Dh) ** (-0.5)), 'seg_len': seg}
    _B_in = _B_setup()
    return {'A_x': _A_in['x'], 'A_wqkv': _A_in['wqkv'], 'A_wo': _A_in['wo'], 'B_x': _B_in['x'], 'B_mem0': _B_in['mem0'], 'B_Wq': _B_in['Wq'], 'B_Wk': _B_in['Wk'], 'B_Wv': _B_in['Wv'], 'B_Wo': _B_in['Wo'], 'B_seg_len': _B_in['seg_len'], 'gate_w': _w((lambda *s: torch.randn(*s, dtype=torch.bfloat16) * 0.05)(512) * 16.0)}

def reference(A_x, A_wqkv, A_wo, B_x, B_mem0, B_Wq, B_Wk, B_Wv, B_Wo, B_seg_len, gate_w):

    def _A_ref(x, wqkv, wo):
        B, S, D = x.shape
        H = 32
        Dh = D // H
        W = 256
        qkv = (lambda x, *d: x.permute(*d))((x @ wqkv).reshape(B, S, 3, H, Dh), 2, 0, 3, 1, 4)
        q, k, v = (qkv[0], qkv[1], qkv[2])
        scores = torch.einsum('bhqd,bhkd->bhqk', q, k) * Dh ** (-0.5)
        idx = torch.arange(S)
        mask = (idx[:, None] - idx[None, :] >= 0) & (idx[:, None] - idx[None, :] < W)
        scores = torch.where(mask[None, None], scores, -1000000000.0)
        p = _softmax(scores, axis=-1)
        o = torch.einsum('bhqk,bhkd->bhqd', p, v)
        return (lambda x, *d: x.permute(*d))(o, 0, 2, 1, 3).reshape(B, S, D) @ wo

    def _B_ref(x, mem0, Wq, Wk, Wv, Wo, seg_len):
        B, S, Dm = x.shape
        H, Dh = (Wq.shape[1], Wq.shape[2])
        M = mem0.shape[1]
        scale = Dh ** (-0.5)
        n_seg = S // seg_len
        L = M + seg_len
        idx = torch.arange(L)
        mask = (idx[:, None] < M) | (idx[:, None] >= idx[None, :])
        mem = mem0
        outs = []
        for s in range(n_seg):
            xs = x[:, s * seg_len:(s + 1) * seg_len, :].clone()
            h = torch.concatenate([mem, xs], axis=1)
            q = torch.einsum('btd,dhe->bhte', h, Wq)
            k = torch.einsum('btd,dhe->bhte', h, Wk)
            v = torch.einsum('btd,dhe->bhte', h, Wv)
            scores = torch.einsum('bhqe,bhke->bhqk', q, k) * scale
            scores = torch.where(mask[None, None], scores, -1000000000.0)
            p = _softmax(scores, axis=-1)
            o = torch.einsum('bhqk,bhke->bhqe', p, v)
            o = torch.einsum('bhte,hed->btd', o, Wo)
            mem = o[:, :M, :].clone()
            outs.append(o[:, M:, :])
        return torch.concatenate(outs, axis=1)
    x = A_x
    g = _sigmoid((x * gate_w).sum(-1, keepdims=True))
    a = _A_ref(x, A_wqkv, A_wo)
    b = _B_ref(x, B_mem0, B_Wq, B_Wk, B_Wv, B_Wo, B_seg_len)
    return g * a + (1 - g) * b
```

```python
import re

REG_RE = re.compile(r'\b([vas])(?:(\d+)|\[(\d+):(\d+)\])')

def regs_of(op):
    op = op.strip()
    out = set()
    if op in ('vcc', 'vcc_lo', 'vcc_hi'):
        return {('s', 106), ('s', 107)}
    if op in ('exec', 'exec_lo', 'exec_hi'):
        return {('x', 0)}
    if op == 'm0':
        return {('m', 0)}
    if op == 'scc':
        return set()
    for m in REG_RE.finditer(op):
        k = m.group(1)
        if m.group(2) is not None:
            out.add((k, int(m.group(2))))
        else:
            for i in range(int(m.group(3)), int(m.group(4)) + 1):
                out.add((k, i))
    return out

TRANS = ('v_exp_f32', 'v_log_f32', 'v_rcp_f32', 'v_rsq_f32', 'v_sqrt_f32', 'v_sin_f32', 'v_cos_f32', 'v_rcp_iflag_f32')

def mfma_passes(mn):
    if '32x32x16' in mn or '32x32x8' in mn or '32x32x32' in mn:
        return 8
    if '16x16x32' in mn or '16x16x16' in mn or '16x16x64' in mn:
        return 4
    raise ValueError(mn)

class Ins:
    __slots__ = ('mn', 'ops', 'text', 'cls', 'dst', 'src', 'srcC', 'passes', 'dpp', 'wide_store_data')

def split_ops(s):
    ops, depth, cur = [], 0, ''
    for ch in s:
        if ch in '[(':
            depth += 1
        if ch in '])':
            depth -= 1
        if ch == ',' and depth == 0:
            ops.append(cur.strip()); cur = ''
        else:
            cur += ch
    if cur.strip():
        ops.append(cur.strip())
    return ops

def parse(text):
    t = text.split(';')[0].strip()
    parts = t.split(None, 1)
    mn = parts[0]
    rest = parts[1] if len(parts) > 1 else ''
    ops = split_ops(rest)
    mods = ''
    if ops:
        l = ops[-1].split(None, 1)
        if len(l) > 1 and not ops[-1].startswith('hwreg'):
            ops[-1] = l[0]; mods = l[1]
    I = Ins(); I.mn = mn; I.ops = ops; I.text = text
    I.dst = set(); I.src = set(); I.srcC = set(); I.passes = 0; I.dpp = ('dpp' in mn) or ('row_' in mods) or ('quad_perm' in mods)
    I.wide_store_data = set()
    R = [regs_of(o) for o in ops]
    if mn.startswith('v_mfma') :
        I.cls = 'mfma'; I.passes = mfma_passes(mn)
        I.dst = R[0]; I.src = R[1] | R[2]; I.srcC = R[3]
    elif mn.startswith('v_smfmac'):
        I.cls = 'mfma'; I.passes = mfma_passes(mn)
        I.dst = R[0]; I.src = R[1] | R[2] | R[3]; I.srcC = R[0]
    elif mn.startswith('v_'):
        I.cls = 'valu'
        if mn.startswith('v_permlane') and 'swap' in mn:
            I.dst = R[0] | R[1]; I.src = R[0] | R[1]
        elif mn.startswith('v_cmpx'):
            I.dst = R[0] | {('x', 0)}; I.src = set().union(*R[1:])
        elif re.match(r'v_(add|sub|subrev|addc|subb|subbrev)_co', mn) or mn.startswith('v_div_scale') or mn.startswith('v_mad_u64'):
            I.dst = R[0] | R[1]; I.src = set().union(*R[2:])
        elif mn == 'v_nop':
            pass
        else:
            I.dst = R[0]; I.src = set().union(*R[1:]) if len(R) > 1 else set()
            if mn.startswith('v_fmac') or mn.startswith('v_dot2c') or mn.startswith('v_pk_fmac') or I.dpp or mn.startswith('v_writelane'):
                I.src |= R[0]
            if mn.startswith('v_cndmask') and len(ops) == 3:
                I.src |= regs_of('vcc')
    elif mn.startswith('ds_'):
        I.cls = 'ds'
        if mn.startswith('ds_read') or mn.startswith('ds_bpermute') or mn.startswith('ds_permute') or mn.startswith('ds_swizzle'):
            I.dst = R[0]; I.src = set().union(*R[1:])
        else:
            I.src = set().union(*R)
    elif mn.startswith('buffer_') or mn.startswith('global_') or mn.startswith('flat_'):
        I.cls = 'vmem'
        islds = (' lds' in (' ' + mods)) or '_lds_' in mn
        if mn in ('buffer_wbl2', 'buffer_inv'):
            pass
        elif 'load' in mn and not islds:
            I.dst = R[0]; I.src = set().union(*R[1:])
        elif 'load' in mn and islds:
            I.src = set().union(*R) | {('m', 0)}
        elif 'atomic' in mn:
            I.src = set().union(*R)
            if 'sc0' in mods:
                I.dst = R[0]
        else:
            I.src = set().union(*R)
            if 'x4' in mn or 'x3' in mn:
                I.wide_store_data = R[0] if mn.startswith('buffer_') else R[1]
    elif mn.startswith('s_'):
        I.cls = 'salu'
        nodst = ('s_cmp', 's_branch', 's_cbranch', 's_waitcnt', 's_barrier', 's_nop', 's_endpgm', 's_sleep', 's_setprio', 's_bitcmp', 's_setreg', 's_sethalt', 's_setpc')
        if mn.startswith(nodst):
            I.src = set().union(*R) if R else set()
        else:
            I.dst = R[0]; I.src = set().union(*R[1:]) if len(R) > 1 else set()
            if 'saveexec' in mn:
                I.dst |= {('x', 0)}
    else:
        raise ValueError('cannot parse: ' + text)
    return I

def need(prod, cons):
    n = 0
    pv = {r for r in prod.dst if r[0] in 'va'}
    ps = {r for r in prod.dst if r[0] == 's'}
    if prod.cls == 'valu':
        if cons.cls == 'mfma' and pv & (cons.src | cons.srcC):
            n = max(n, 2)
        if cons.cls == 'mfma' and ('x', 0) in prod.dst:
            n = max(n, 4)
        if cons.cls == 'valu':
            if cons.mn.startswith('v_permlane') and pv & cons.src:
                n = max(n, 2)
            if cons.mn.startswith('v_permlane') and ('x', 0) in prod.dst:
                n = max(n, 4)
            if cons.dpp and pv & cons.src:
                n = max(n, 2)
            if cons.dpp and ('x', 0) in prod.dst:
                n = max(n, 5)
            if (cons.mn.startswith('v_readlane') or cons.mn.startswith('v_readfirstlane')) and pv & cons.src:
                n = max(n, 1)
            if (cons.mn.startswith('v_readlane') or cons.mn.startswith('v_writelane')) and ps & cons.src:
                n = max(n, 4)
            if (cons.mn.startswith('v_readlane') or cons.mn.startswith('v_readfirstlane') or cons.mn.startswith('v_writelane')) and ('x', 0) in prod.dst:
                n = max(n, 4)
            if ps & cons.src:
                n = max(n, 2)
            if cons.mn.startswith('v_div_fmas') and ps & regs_of('vcc'):
                n = max(n, 4)
            if prod.mn.startswith(TRANS) and not cons.mn.startswith(TRANS) and pv & (cons.src):
                n = max(n, 1)
            if prod.mn.startswith(TRANS) and pv & cons.src:
                n = max(n, 1)
            if ('op_sel' in prod.text or 'sdwa' in prod.text) and pv & (cons.src | cons.dst):
                n = max(n, 1)
        if cons.cls == 'vmem' and ps & cons.src:
            n = max(n, 5)
        if cons.cls == 'salu' and ps & cons.src:
            n = max(n, 1)
        if cons.cls == 'salu' and cons.mn.startswith('s_cbranch_exec') and ('x', 0) in prod.dst:
            n = max(n, 5)
        if cons.cls in ('ds', 'vmem') and prod.mn.startswith(TRANS) and pv & cons.src:
            n = max(n, 1)
    if prod.cls == 'mfma':
        p = prod.passes
        if cons.cls == 'mfma':
            if pv & cons.src:
                n = max(n, {2: 5, 4: 8, 8: 12, 16: 20}[p])
            if pv & cons.srcC:
                if cons.srcC == prod.dst and cons.mn == prod.mn:
                    n = max(n, 0 if p >= 4 else 2)
                else:
                    n = max(n, {2: 4, 4: 6, 8: 10, 16: 18}[p])
            elif pv & cons.dst:
                n = max(n, {2: 4, 4: 6, 8: 10, 16: 18}[p])
        else:
            if pv & (cons.src | cons.dst):
                n = max(n, {2: 5, 4: 8, 8: 12, 16: 20}[p])
            if cons.cls in ('valu', 'ds', 'vmem') and prod.srcC & cons.dst:
                n = max(n, {2: 1, 4: 3, 8: 7, 16: 15}[p])
    if prod.cls == 'vmem' and prod.wide_store_data and prod.wide_store_data & cons.dst:
        n = max(n, 2)
    if prod.cls == 'salu' and ('m', 0) in prod.dst and ('m', 0) in cons.src:
        n = max(n, 1)
    return n

class Asm:
    def __init__(self):
        self.lines = []
        self.hist = []
        self.pos = 0
        self.nlabel = 0

    def raw(self, s):
        self.lines.append(s)

    def comment(self, s):
        self.lines.append('    ; ' + s)

    def _states(self, I):
        if I.mn == 's_nop':
            return int(I.ops[0], 0) + 1
        return 1

    def __call__(self, text):
        for t in text.strip().split('\n'):
            t = t.strip()
            if not t or t.startswith(';'):
                continue
            self.ins(t)

    def ins(self, text):
        I = parse(text)
        req = 0
        for (P, ppos) in self.hist:
            dist = self.pos - ppos
            n = need(P, I)
            if n > dist:
                req = max(req, n - dist)
        while req > 0:
            k = min(req, 16)
            self.lines.append('    s_nop %d' % (k - 1))
            self.pos += k
            req -= k
        self.lines.append('    ' + text)
        st = self._states(I)
        self.pos += st
        self.hist.append((I, self.pos))
        self.hist = [(p, q) for (p, q) in self.hist if self.pos - q < 24]
        if I.mn.startswith('s_branch') or I.mn.startswith('s_cbranch') or I.mn.startswith('s_setpc'):
            pass

    def flush(self):
        req = 0
        for (P, ppos) in self.hist:
            dist = self.pos - ppos
            if P.cls == 'mfma':
                n = {2: 5, 4: 8, 8: 12, 16: 20}[P.passes]
            elif P.cls == 'valu':
                n = 5 if any(r[0] in 'sx' for r in P.dst) else 2
            elif P.cls == 'vmem' and P.wide_store_data:
                n = 2
            elif P.cls == 'salu' and ('m', 0) in P.dst:
                n = 1
            else:
                n = 0
            req = max(req, n - dist)
        while req > 0:
            k = min(req, 16)
            self.lines.append('    s_nop %d' % (k - 1))
            self.pos += k
            req -= k
        self.hist = []

    def label(self, name, flush=True):
        if flush:
            self.flush()
        self.lines.append(name + ':')

    def br(self, text):
        I = parse(text)
        self.flush()
        self.lines.append('    ' + text)
        self.pos += 1

    def newlabel(self, base='L'):
        self.nlabel += 1
        return '%s_%d' % (base, self.nlabel)

    def text(self):
        return '\n'.join(self.lines) + '\n'
```

```python
from asmlib import *
from layout import *

S_X, S_WQKV, S_WO_A, S_MEM0, S_WQ, S_WK, S_WV, S_WO, S_GW, S_OUT, S_DBG, S_WS = 4, 6, 8, 10, 12, 14, 16, 18, 20, 22, 24, 26
R_WS, R_W, R_X, R_DBG, R_OUT = 28, 32, 36, 40, 44
S_W = 48
S_H = 49
S_STEP = 50
S_T0, S_T1, S_T2, S_T3 = 52, 53, 54, 55
S_C = 56
S_H1S = 60
S_H1L = 64
S_KV = 68
S_KM = 69
S_W1K = 70
S_MODE = 71
S_M0A, S_M0B = 72, 73
S_MSK = 74
S_MSK2 = 76
S_XCC = 78
S_SPIN = 79

def srd(A, r, ptr, nbytes):
    A(f'''
    s_mov_b32 s{r}, s{ptr}
    s_and_b32 s{r+1}, s{ptr+1}, 0xffff
    s_mov_b32 s{r+2}, {nbytes:#x}
    s_mov_b32 s{r+3}, 0x00020000
    ''')

def common_prologue(A):
    A(f'''
    s_load_dwordx4 s[4:7], s[0:1], 0
    s_load_dwordx2 s[8:9], s[0:1], 16
    s_load_dwordx2 s[10:11], s[0:1], 32
    s_load_dwordx8 s[12:19], s[0:1], 40
    s_load_dwordx8 s[20:27], s[0:1], 80
    v_lshrrev_b32 v1, 6, v0
    s_getreg_b32 s{S_XCC}, hwreg(HW_REG_XCC_ID)
    v_readfirstlane_b32 s{S_W}, v1
    s_and_b32 s{S_XCC}, s{S_XCC}, 15
    s_waitcnt lgkmcnt(0)
    ''')
    srd(A, R_WS, S_WS, WS_BYTES)
    srd(A, R_X, S_X, 2048 * 512 * 2)
    srd(A, R_DBG, S_DBG, 256)
    srd(A, R_OUT, S_OUT, 2048 * 512 * 2)

V_IDX = 0
V_L = 1
V_MLW = 2
V_QW = 3
V_QR = 4
V_KR = 5
V_OW = 6
V_WL0 = 7
V_WL1 = 8
V_H1S = 9
V_H1L = 10
V_H2S = 11
V_TM = 12
V_A = 16
V_AQ = 48
V_AK = 56
V_AV = 64
V_WR = 72
V_QF = 88
V_KF = 104
V_VN = 112
V_VX = 120

def vr(b, n):
    return f'v[{b}:{b+n-1}]' if n > 1 else f'v{b}'
def ar(b, n):
    return f'a[{b}:{b+n-1}]'

def wreg(m, o):
    if o % 4 == 3:
        return None
    idx = m * 12 + (o // 4) * 3 + (o % 4)
    if idx < 32:
        return ('a', idx * 8)
    return ('v', 128 + (idx - 32) * 8)

def wtxt(kb, off, n):
    k, b = kb
    return f'{k}[{b+off}:{b+off+n-1}]'

def lds_op_addr(u, hf):
    off = L_WV + u * 8192 + hf * 1024
    if off >= 65536:
        return V_WL1, off - 65536
    return V_WL0, off

def chain_load_weights(A):
    vL, vG, vR, vC, vDq, vDo0, vDo1, vTq, vTv, vCur, vTmp = range(16, 27)
    vTo = 28
    HOLD = 32
    A(f'''
    v_mbcnt_lo_u32_b32 v{vL}, -1, 0
    v_mbcnt_hi_u32_b32 v{vL}, -1, v{vL}
    v_lshrrev_b32 v{vG}, 4, v{vL}
    v_bfe_u32 v{vR}, v{vL}, 2, 2
    v_and_b32 v{vC}, 3, v{vL}
    s_lshl_b32 s{S_T0}, s{S_W}, 2
    v_and_b32 v{vTmp}, 15, v{vL}
    v_xor_b32 v{vTmp}, s{S_T0}, v{vTmp}
    v_lshlrev_b32 v{vTmp}, 4, v{vTmp}
    v_lshl_add_u32 v{vDq}, v{vG}, 13, v{vTmp}
    s_lshl_b32 s{S_T1}, s{S_W}, 15
    s_lshl_b32 s{S_T2}, s{S_H}, 8
    s_add_u32 s{S_T1}, s{S_T1}, s{S_T2}
    v_add_u32 v{vDq}, s{S_T1}, v{vDq}
    s_and_b32 s{S_T0}, s{S_W}, 1
    s_lshl_b32 s{S_T0}, s{S_T0}, 2
    v_xor_b32 v{vDo0}, s{S_T0}, v{vL}
    v_xor_b32 v{vDo1}, 8, v{vDo0}
    s_lshl_b32 s{S_T1}, s{S_W}, 10
    s_lshl_b32 s{S_T2}, s{S_H}, 17
    s_add_u32 s{S_T1}, s{S_T1}, s{S_T2}
    v_lshl_add_u32 v{vDo0}, v{vDo0}, 4, s{S_T1}
    v_lshl_add_u32 v{vDo1}, v{vDo1}, 4, s{S_T1}
    ''')
    order = [0, 1, 3, 2]
    ptrs = {0: S_WQ, 1: S_WK, 2: S_WV, 3: S_WO}

    def issue(n):
        mat = order[n // 8]; c = n % 8
        if c == 0:
            srd(A, R_W, ptrs[mat], 4 << 20)
        for i in range(4):
            A(f's_lshl_b32 s{S_T0}, s{S_W}, 10')
            A(f's_add_u32 m0, s{S_T0}, {L_WV + c*16384 + i*4096}')
            if mat == 3:
                A(f's_mov_b32 s{S_T1}, {(c*16 + 4*i)*1024}')
                A(f'buffer_load_dwordx4 v{vDo1 if i & 1 else vDo0}, s[{R_W}:{R_W+3}], s{S_T1} offen lds')
            else:
                A(f's_mov_b32 s{S_T1}, {(c*64 + 16*i)*8192}')
                A(f'buffer_load_dwordx4 v{vDq}, s[{R_W}:{R_W+3}], s{S_T1} offen lds')
    for n in range(8):
        issue(n)
    A(f'''
    v_lshrrev_b32 v{vTmp}, 1, v{vG}
    v_lshlrev_b32 v{vTq}, 4, v{vTmp}
    v_and_b32 v{vTmp}, 1, v{vG}
    v_lshl_add_u32 v{vTq}, v{vTmp}, 1, v{vTq}
    v_lshl_add_u32 v{vTq}, v{vR}, 2, v{vTq}
    v_lshlrev_b32 v{vTq}, 8, v{vTq}
    v_xor_b32 v{vTmp}, s{S_W}, v{vR}
    v_lshlrev_b32 v{vTmp}, 6, v{vTmp}
    v_add_u32 v{vTv}, v{vTq}, v{vTmp}
    v_lshl_add_u32 v{vTq}, v{vC}, 4, v{vTv}
    v_lshl_add_u32 v{vTv}, v{vC}, 3, v{vTv}
    v_and_b32 v{vTmp}, 1, v{vG}
    v_lshlrev_b32 v{vCur}, 4, v{vTmp}
    v_lshrrev_b32 v{vTmp}, 1, v{vG}
    v_lshl_add_u32 v{vCur}, v{vTmp}, 3, v{vCur}
    v_lshrrev_b32 v{vTmp}, 1, v{vR}
    v_lshl_add_u32 v{vCur}, v{vTmp}, 2, v{vCur}
    v_and_b32 v{vTmp}, 1, v{vR}
    v_add_u32 v{vCur}, v{vCur}, v{vTmp}
    v_lshlrev_b32 v{vCur}, 10, v{vCur}
    v_lshl_add_u32 v{vCur}, v{vC}, 4, v{vCur}
    s_lshl_b32 s{S_T0}, s{S_W}, 8
    v_add_u32 v{vCur}, s{S_T0}, v{vCur}
    s_lshr_b32 s{S_T1}, s{S_H}, 3
    ''')
    for q in range(4):
        A(f'''
        s_add_u32 s{S_T2}, s{S_T1}, {q}
        s_and_b32 s{S_T2}, s{S_T2}, 3
        v_xor_b32 v{vTmp}, s{S_T2}, v{vR}
        v_lshl_add_u32 v{vTo+q}, v{vTmp}, 6, v{vCur}
        ''')
    hold = {}
    free_hold = [HOLD + 8*i for i in range(12)]
    def dest(m, o):
        kb = wreg(m, o)
        if kb is not None:
            return kb
        u = m*4 + o//4
        if u not in hold:
            hold[u] = free_hold.pop(0)
        return ('v', hold[u])
    ready = []
    n = 0
    while n < 32:
        mat = order[n // 8]; c = n % 8
        cnt = 2 if mat == 3 else 1
        last = n + cnt - 1
        issued = min(32, n + 8)
        A(f's_waitcnt vmcnt({(issued - last - 1) * 4})')
        A('s_barrier')
        if mat != 3:
            A(f'v_add_u32 v{vCur}, {L_WV + c*16384}, v{vTv if mat == 2 else vTq}')
            for j in range(2):
                o = 2*c + j
                kb = dest(mat, o)
                for rp in range(4):
                    A(f'ds_read_b64_tr_b16 {wtxt(kb, 2*rp, 2)}, v{vCur} offset:{(32*(rp>>1) + (rp&1))*256 + j*(32 if mat == 2 else 8)}')
                if wreg(mat, o) is None:
                    ready.append(mat*4 + o//4)
        else:
            P = c // 2
            for q in range(4):
                if P == 2:
                    A(f'v_add_u32 v{vTo+q}, 0x10000, v{vTo+q}')
                for e in range(2):
                    ks = P >> 1
                    o = 4*q + 2*ks + e
                    kb = dest(3, o)
                    for rl in range(2):
                        rp = 2*(P & 1) + rl
                        A(f'ds_read_b64_tr_b16 {wtxt(kb, 2*rp, 2)}, v{vTo+q} offset:{L_WV + (P&1)*32768 + 2*rl*1024 + e*8}')
                    if wreg(3, o) is None and (P & 1):
                        ready.append(12 + o//4)
        A('s_waitcnt lgkmcnt(0)')
        A('s_barrier')
        if n >= 24:
            for u in sorted(ready):
                if u // 2 <= c:
                    for hf in range(2):
                        b, off = lds_op_addr(u, hf)
                        A(f'ds_write_b128 v{b}, {vr(hold[u] + 4*hf, 4)} offset:{off}')
                    ready.remove(u)
                    free_hold.append(hold[u])
            A('s_waitcnt lgkmcnt(0)')
        for k in range(cnt):
            if n + k + 8 < 32:
                issue(n + k + 8)
        n += cnt
    assert not ready, ready

def chain_consts(A):
    t0, t1, t2, t3, t4 = 16, 17, 18, 19, 20
    A(f'''
    v_and_b32 v{t0}, 63, v0
    v_lshlrev_b32 v{t4}, 4, v{t0}
    v_lshlrev_b32 v{t1}, 4, v0
    v_add_u32 v{V_MLW}, {L_ML}, v{t1}
    v_add_u32 v{V_L}, {L_KX}, v{t4}
    s_lshl_b32 s{S_T0}, s{S_W}, 11
    v_add_u32 v{V_WL0}, s{S_T0}, v{t4}
    v_add_u32 v{V_WL1}, 0x10000, v{V_WL0}
    v_lshrrev_b32 v{t1}, 4, v{t0}
    v_and_b32 v{t2}, 15, v{t0}
    v_lshrrev_b32 v{t3}, 2, v{t2}
    v_lshlrev_b32 v{V_QW}, 7, v{t3}
    v_lshl_add_u32 v{V_QW}, v{t1}, 5, v{V_QW}
    v_and_b32 v{t3}, 3, v{t2}
    v_lshl_add_u32 v{V_QW}, v{t3}, 2, v{V_QW}
    s_lshl_b32 s{S_T0}, s{S_W}, 10
    s_add_u32 s{S_T0}, s{S_T0}, {L_Q}
    v_add_u32 v{V_QW}, s{S_T0}, v{V_QW}
    v_and_b32 v{t3}, 7, v{t2}
    v_lshlrev_b32 v{V_QR}, 4, v{t3}
    v_lshl_add_u32 v{V_QR}, v{t1}, 7, v{V_QR}
    v_add_u32 v{V_QR}, {L_Q}, v{V_QR}
    v_lshrrev_b32 v{t3}, 2, v{t2}
    v_lshlrev_b32 v{V_KR}, 5, v{t3}
    v_and_b32 v{t3}, 1, v{t2}
    v_lshl_add_u32 v{V_KR}, v{t3}, 4, v{V_KR}
    v_lshl_add_u32 v{V_KR}, v{t1}, 7, v{V_KR}
    v_add_u32 v{V_KR}, {L_Q + 512}, v{V_KR}
    v_and_b32 v{t3}, 7, v{t2}
    v_lshlrev_b32 v{V_OW}, 5, v{t3}
    v_lshrrev_b32 v{t3}, 1, v{t1}
    v_lshl_add_u32 v{V_OW}, v{t3}, 8, v{V_OW}
    v_and_b32 v{t3}, 1, v{t1}
    v_lshl_add_u32 v{V_OW}, v{t3}, 4, v{V_OW}
    s_lshl_b32 s{S_T0}, s{S_W}, 9
    s_add_u32 s{S_T0}, s{S_T0}, {L_O}
    v_add_u32 v{V_OW}, s{S_T0}, v{V_OW}
    v_and_b32 v{t3}, 7, v{t2}
    v_lshlrev_b32 v{V_H1S}, 4, v{t3}
    v_lshl_add_u32 v{V_H1S}, v{t1}, 7, v{V_H1S}
    v_lshrrev_b32 v{t3}, 3, v{t2}
    v_lshl_add_u32 v{V_H1S}, v{t3}, 14, v{V_H1S}
    s_lshr_b32 s{S_T1}, s{S_H}, 3
    ''')
    for q in range(4):
        A(f'''
        s_add_u32 s{S_T2}, s{S_T1}, {q}
        s_and_b32 s{S_T2}, s{S_T2}, 3
        s_lshl_b32 s{S_T3}, s{S_W}, 2
        s_add_u32 s{S_T2}, s{S_T2}, s{S_T3}
        s_lshl_b32 s{S_T2}, s{S_T2}, 15
        s_lshl_b32 s{S_T3}, s{S_H}, 9
        s_add_u32 s{S_T2}, s{S_T2}, s{S_T3}
        s_add_u32 s{S_H1S+q}, s{S_T2}, {WS_X1}
        ''')
    A(f'''
    v_and_b32 v{t3}, 7, v{t0}
    v_lshlrev_b32 v{V_H1L}, 4, v{t3}
    v_lshrrev_b32 v{t3}, 3, v{t0}
    v_lshl_add_u32 v{V_H1L}, v{t3}, 9, v{V_H1L}
    s_lshr_b32 s{S_T1}, s{S_H}, 1
    ''')
    for q in range(4):
        A(f'''
        s_sub_u32 s{S_T2}, s{S_T1}, {q}
        s_and_b32 s{S_T2}, s{S_T2}, 3
        s_lshl_b32 s{S_T2}, s{S_T2}, 12
        s_lshl_b32 s{S_T3}, s{S_H}, 14
        s_add_u32 s{S_T2}, s{S_T2}, s{S_T3}
        s_lshl_b32 s{S_T3}, s{S_W}, 7
        s_add_u32 s{S_T2}, s{S_T2}, s{S_T3}
        s_add_u32 s{S_H1L+q}, s{S_T2}, {WS_X1}
        ''')
    A(f'''
    v_and_b32 v{t3}, 7, v{t0}
    v_lshlrev_b32 v{V_H2S}, 2, v{t3}
    v_lshrrev_b32 v{t3}, 5, v{t0}
    v_lshl_add_u32 v{V_H2S}, v{t3}, 5, v{V_H2S}
    s_lshl_b32 s{S_T0}, s{S_W}, 6
    s_lshl_b32 s{S_T1}, s{S_H}, 8
    s_add_u32 s{S_T0}, s{S_T0}, s{S_T1}
    s_add_u32 s{S_T0}, s{S_T0}, {WS_X2}
    v_add_u32 v{V_H2S}, s{S_T0}, v{V_H2S}
    s_mov_b32 s{S_MSK}, 0xff
    s_mov_b32 s{S_MSK+1}, 0xff
    s_mov_b32 s{S_C}, 0x3e0293ee
    v_and_b32 v{t1}, 1, v{t0}
    v_mov_b32 v{t2}, 0xeeee
    v_cmp_eq_u32 vcc, 1, v{t1}
    v_mov_b32 v{V_IDX}, 0x4444
    v_cndmask_b32 v{V_IDX}, v{V_IDX}, v{t2}, vcc
    ''')

import struct
assert abs(struct.unpack('<f', struct.pack('<I', 0x3e0293ee))[0] - (128 ** -0.5) * 1.4426950408889634) < 1e-8

class Cnt:
    def __init__(self, A, name, maxv):
        self.A, self.name, self.q, self.maxv = A, name, [], maxv
    def issue(self, text, tag=None):
        self.A(text); self.q.append(tag)
        assert len(self.q) <= self.maxv, (self.name, self.q)
    def wait(self, tag):
        idx = [i for i, t in enumerate(self.q) if t == tag]
        if not idx:
            return
        n = len(self.q) - 1 - idx[-1]
        self.A(f's_waitcnt {self.name}({n})')
        self.q = self.q[idx[-1] + 1:]
    def wait_all(self):
        self.A(f's_waitcnt {self.name}(0)')
        self.q = []

SENT = 0xFFFFFFFF

PROF = [False]
S_PT = 86
S_PA = 88

def chain_step(A, par, fast, last=False, hooks=None):
    st = '' if fast else ' sc1'
    L = Cnt(A, 'lgkmcnt', 15)
    ws = f's[{R_WS}:{R_WS+3}]'
    VXc = V_VX if par == 0 else V_VN
    VXn = V_VN if par == 0 else V_VX
    def ring(u):
        return V_WR + 8 * (u & 1)
    def ring_fetch(u):
        u %= 16
        for hf in range(2):
            b, off = lds_op_addr(u, hf)
            L.issue(f'ds_read_b128 {vr(ring(u) + 4*hf, 4)}, v{b} offset:{off}', ('w', u))
    fill = []
    def F(n=2):
        for _ in range(n):
            if fill:
                f = fill.pop(0)
                if callable(f): f()
                else: A(f)
    def drain():
        while fill: F(1)
    def smf(m, o, acc, afrag, nf=2):
        kb = wreg(m, o)
        if kb is None:
            u = m*4 + o//4
            L.wait(('w', u))
            A(f'v_smfmac_f32_16x16x64_bf16 {vr(acc,4)}, {vr(afrag,4)}, {vr(ring(u),8)}, v{V_IDX}')
            if not (last and u + 2 >= 12):
                ring_fetch(u + 2)
        else:
            A(f'v_smfmac_f32_16x16x64_bf16 {vr(acc,4)}, {vr(afrag,4)}, {wtxt(kb,0,8)}, v{V_IDX}')
            F(nf)
    def mf(d, a, b, c, shape='16x16x32', nf=2):
        n = 4 if shape == '16x16x32' else 2
        A(f'v_mfma_f32_{shape}_bf16 {vr(d,4)}, {vr(a,n)}, {vr(b,n)}, {c if c == 0 else vr(c,4)}')
        F(nf)
    def stamp(i):
        if not PROF[0] or last or par != 0:
            return
        A(f's_memtime s[{80+2*i}:{81+2*i}]')
        if i == 10:
            sk = A.newlabel('np')
            A(f's_cmp_lg_u32 s{S_STEP}, {PROF[0]}')
            A.br(f's_cbranch_scc1 {sk}')
            A('s_waitcnt lgkmcnt(0)')
            A(f's_lshl_b32 s{S_T0}, s{S_H}, 2')
            A(f's_add_u32 s{S_T0}, s{S_T0}, s{S_W}')
            A(f's_lshl_b32 s{S_T0}, s{S_T0}, 6')
            A(f's_add_u32 s{S_T0}, s{S_T0}, 4096')
            A(f'v_mov_b32 v{V_QF+1}, s{S_T0}')
            A('s_mov_b64 exec, 1')
            for k in range(11):
                A(f'v_mov_b32 v{V_QF}, s{80+2*k}')
                A(f'buffer_store_dword v{V_QF}, v{V_QF+1}, {ws}, 0 offen offset:{4*k}')
            A(f'v_mov_b32 v{V_QF}, s{S_MSK2}')
            A(f'buffer_store_dword v{V_QF}, v{V_QF+1}, {ws}, 0 offen offset:44')
            A(f'v_mov_b32 v{V_QF}, s{S_MSK2+1}')
            A(f'buffer_store_dword v{V_QF}, v{V_QF+1}, {ws}, 0 offen offset:48')
            A('s_mov_b64 exec, -1')
            A('s_waitcnt vmcnt(0)')
            A.label(sk)
    def publish_ops(kt):
        return [
            f'v_add_u32 v{kt+4}, s{S_W1K}, v{V_KR}',
            lambda: L.issue(f'ds_read_b128 {vr(kt,4)}, v{kt+4}', 'kp'),
            f's_add_u32 s{S_T3}, s{S_KM}, {WS_VM - WS_KM}',
            f'buffer_store_dwordx4 {vr(V_KF+4,4)}, v{V_L}, {ws}, s{S_T3} offen sc1',
            lambda: L.wait('kp'),
            f'buffer_store_dwordx4 {vr(kt,4)}, v{V_L}, {ws}, s{S_KM} offen sc1',
            f's_add_u32 s{S_KM}, s{S_KM}, {32*4096}',
        ]
    def post_ops(acc, woff):
        return [
            f'v_add_f32 v{acc}, v{acc}, v{acc+1}',
            f'v_add_f32 v{acc+4}, v{acc+4}, v{acc+5}',
            f'v_add_f32 v{acc+2}, v{acc+2}, v{acc+3}',
            f'v_add_f32 v{acc+6}, v{acc+6}, v{acc+7}',
            f'v_cvt_pk_bf16_f32 v{acc}, v{acc}, v{acc+4}',
            f'v_cvt_pk_bf16_f32 v{acc+2}, v{acc+2}, v{acc+6}',
            lambda: L.issue(f'ds_write2_b32 v{V_QW}, v{acc}, v{acc+2} offset0:{woff} offset1:{woff+4}', ('pw', acc)),
        ]
    vpost = [
        f'v_add_f32 v{V_AV}, v{V_AV}, v{V_AV+1}',
        f'v_add_f32 v{V_AV+2}, v{V_AV+2}, v{V_AV+3}',
        f'v_add_f32 v{V_AV+4}, v{V_AV+4}, v{V_AV+5}',
        f'v_add_f32 v{V_AV+6}, v{V_AV+6}, v{V_AV+7}',
        f'v_cvt_pk_bf16_f32 v{V_KF+4}, v{V_AV}, v{V_AV+2}',
        f'v_cvt_pk_bf16_f32 v{V_KF+6}, v{V_AV+4}, v{V_AV+6}',
    ]

    A('s_waitcnt lgkmcnt(0)')
    A('s_barrier')
    for ks in range(8):
        L.issue(f'ds_read_b128 {vr(V_A+4*ks,4)}, v{V_L} offset:{L_ML - L_KX + ks*1024}', ('A', ks))
    if hooks and 'b1' in hooks:
        hooks['b1'](A)
    stamp(0)
    if not last:
        A.comment('phase Q')
        fill += [
            f's_mov_b32 m0, s{S_M0B if par == 0 else S_M0A}',
            f's_add_u32 s{S_T2}, s{S_KV}, {WS_VX - WS_KX}',
            f'buffer_load_dwordx4 v{V_L}, {ws}, s{S_KV} offen sc1 lds',
            f'buffer_load_dwordx4 v{V_L}, {ws}, s{S_KV} offen offset:1024 sc1 lds',
            f'buffer_load_dwordx4 {vr(VXn,4)}, v{V_L}, {ws}, s{S_T2} offen sc1',
            f'buffer_load_dwordx4 {vr(VXn+4,4)}, v{V_L}, {ws}, s{S_T2} offen offset:1024 sc1',
            f's_add_u32 s{S_KV}, s{S_KV}, {32*8192}',
        ]
        fill += publish_ops(V_QF)
        if hooks and 'q' in hooks:
            fill += hooks['q'](A, L)
        for ks in range(8):
            L.wait(('A', ks))
            smf(0, 2*ks, V_AQ, V_A+4*ks, nf=1)
            smf(0, 2*ks+1, V_AQ+4, V_A+4*ks)
        drain()
    else:
        fill += publish_ops(V_QF)
        drain()
        L.wait(('A', 7))
        ring_fetch(4); ring_fetch(5)
    stamp(1)
    kxs = [V_AV, V_AV+4, V_KF, V_KF+4, V_TM, V_KF, V_KF+4, V_TM]
    kxo = [(T, ks) for ks in range(4) for T in range(2)]
    def kx_fetch(i):
        T, ks = kxo[i]
        return lambda: L.issue(f'ds_read_b128 {vr(kxs[i],4)}, v{V_L} offset:{par*8192 + T*4096 + ks*1024}', ('kx', i))
    for ks in range(8):
        if not last:
            if ks == 0:
                fill += [kx_fetch(i) for i in range(5)]
            if ks == 2:
                fill += post_ops(V_AQ, 0)
            if ks == 5:
                drain()
                L.wait(('pw', V_AQ))
                A('s_barrier')
                fill += [(lambda k2=k2: L.issue(f'ds_read_b128 {vr(V_QF+4*k2,4)}, v{V_QR} offset:{k2*1024}', ('qf', k2))) for k2 in range(4)]
        smf(1, 2*ks, V_AK, V_A+4*ks)
        smf(1, 2*ks+1, V_AK+4, V_A+4*ks)
    drain()
    if last:
        for i in range(0, 8, 2):
            A(f'v_mov_b64 {vr(V_AV+i,2)}, 0')
        for ks in range(8):
            if ks == 3:
                fill += post_ops(V_AK, 128)
            smf(2, 2*ks, V_AV, V_A+4*ks)
            smf(2, 2*ks+1, V_AV+4, V_A+4*ks)
        drain()
        for op in vpost: A(op)
        A(f'v_mov_b32 v{V_KF+5}, 0')
        A(f'v_mov_b32 v{V_KF+7}, 0')
        L.wait_all()
        A('s_barrier')
        fill += publish_ops(V_QF)
        drain()
        return
    stamp(2)
    for i in range(8):
        T, ks = kxo[i]
        L.wait(('qf', ks)); L.wait(('kx', i))
        if i == 2:
            fill += post_ops(V_AK, 128)
        mf(V_AQ + 4*T, kxs[i], V_QF+4*ks, 0 if ks == 0 else V_AQ + 4*T, nf=0)
        if 2 <= i <= 4:
            kx_fetch(i + 3)()
        if i < 2:
            A(f'v_mov_b64 {vr(V_AV+4*i,2)}, 0')
            A(f'v_mov_b64 {vr(V_AV+4*i+2,2)}, 0')
        else:
            F(2)
    drain()
    L.wait(('pw', V_AK))
    A('s_barrier')
    kfs = [V_AK, V_AK+4, V_KF, V_KF+4]
    for k2 in range(4):
        L.issue(f'ds_read_b128 {vr(kfs[k2],4)}, v{V_KR} offset:{k2*1024}', ('kf', k2))
    stamp(3)
    T0 = V_AQ; M = V_AK + 6; TT = V_AK + 7; PX = V_AK; PM = V_AK + 4
    ONES = V_KF
    vq = [(ks, j) for ks in range(8) for j in range(2)]
    def vnext(nf=2):
        ks, j = vq.pop(0)
        smf(2, 2*ks+j, V_AV+4*j, V_A+4*ks, nf=nf)
    NV1 = 6
    for _ in range(NV1):
        vnext(1)
    drain()
    for k2 in range(4):
        L.wait(('kf', k2))
        mf(V_TM, kfs[k2], V_QF+4*k2, 0 if k2 == 0 else V_TM, nf=0)
    stamp(4)
    fill += [
        f'v_max3_f32 v{M}, v{T0}, v{T0+1}, v{T0+2}',
        f'v_max3_f32 v{M}, v{M}, v{T0+3}, v{T0+4}',
        f'v_max3_f32 v{M}, v{M}, v{T0+5}, v{T0+6}',
        f'v_max_f32 v{M}, v{M}, v{T0+7}',
    ]
    fill += [f'v_mov_b32 v{ONES+i}, 0x3f803f80' for i in range(4)] + [f'v_mov_b32 v{V_KF+5}, 0', f'v_mov_b32 v{V_KF+7}, 0', f'v_mov_b32 v{PM+1}, 0']
    for _ in range(3):
        vnext(2)
    drain()
    sm = [
        f'v_max3_f32 v{M}, v{M}, v{V_TM}, v{V_TM+1}',
        f'v_mov_b32 v{TT}, v{M}',
        None,
        f'v_permlane32_swap_b32 v{TT}, v{M}',
        f'v_max_f32 v{M}, v{M}, v{TT}',
        f'v_mov_b32 v{TT}, v{M}',
        None,
        f'v_permlane16_swap_b32 v{TT}, v{M}',
        f'v_max_f32 v{M}, v{M}, v{TT}',
        f'v_mul_f32 v{M}, s{S_C}, v{M}',
    ]
    vals = [T0+i for i in range(8)] + [V_TM, V_TM+1]
    for k, r in enumerate(vals):
        sm.append(f'v_fma_f32 v{r}, v{r}, s{S_C}, -v{M}')
        if k % 2 == 1:
            sm.append(None)
    for r in vals:
        sm.append(f'v_exp_f32 v{r}, v{r}')
    for i in range(4):
        sm.append(f'v_cvt_pk_bf16_f32 v{PX+i}, v{T0+2*i}, v{T0+2*i+1}')
    for op in sm:
        if op is None:
            vnext(0)
        else:
            A(op)
    assert not vq, vq
    stamp(5)
    O0, O1, LL, OP = V_QF, V_QF+4, V_QF+8, V_QF+12
    Z = V_AQ
    fill += [f'v_cvt_pk_bf16_f32 v{PM}, v{V_TM}, v{V_TM+1}'] + vpost
    mf(LL, ONES, PX, 0)
    mf(O0, VXc, PX, 0)
    mf(O1, VXc+4, PX, 0, nf=3)
    fill += [f'v_mov_b64 {vr(Z,2)}, 0', f'v_mov_b64 {vr(Z+2,2)}, 0']
    mf(LL, ONES, PM, LL, '16x16x16', nf=1)
    mf(O0, V_KF+4, PM, O0, '16x16x16', nf=1)
    mf(O1, V_KF+6, PM, O1, '16x16x16')
    drain()
    A(f'v_mfma_f32_32x32x16_bf16 {vr(V_A,16)}, {vr(Z,4)}, {vr(Z,4)}, 0')
    A(f'v_mfma_f32_32x32x16_bf16 {vr(V_A+16,16)}, {vr(Z,4)}, {vr(Z,4)}, 0')
    A(f'v_rcp_f32 v{LL}, v{LL}')
    for k in range(8):
        A(f'v_mul_f32 v{O0+k}, v{O0+k}, v{LL}')
    for k in range(4):
        A(f'v_cvt_pk_bf16_f32 v{OP+k}, v{O0+2*k}, v{O0+2*k+1}')
    L.issue(f'ds_write_b128 v{V_OW}, {vr(OP,4)}', 'ow')
    L.wait('ow')
    A('s_barrier')
    L.issue(f'ds_read_b128 {vr(V_AV,4)}, v{V_L} offset:{L_O - L_KX}', ('of', 0))
    L.issue(f'ds_read_b128 {vr(V_AV+4,4)}, v{V_L} offset:{L_O - L_KX + 1024}', ('of', 1))
    stamp(6)
    tag = par
    def w_post(q):
        a = V_A + 8*q; d = V_AQ + 4*q
        ops = [f'v_add_f32 v{d}, v{a}, v{a+1}', f'v_add_f32 v{d+1}, v{a+2}, v{a+3}', f'v_add_f32 v{d+2}, v{a+4}, v{a+5}', f'v_add_f32 v{d+3}, v{a+6}, v{a+7}']
        for i in range(4):
            ops.append(f'v_or_b32 v{d+i}, 1, v{d+i}' if tag else f'v_and_b32 v{d+i}, -2, v{d+i}')
        ops.append(f'buffer_store_dwordx4 {vr(d,4)}, v{V_H1S}, {ws}, s{S_H1S+q} offen{st}')
        return ops
    for q in range(4):
        for ks in range(2):
            L.wait(('of', ks))
            if ks == 1 and q >= 1:
                fill += w_post(q - 1)
            smf(3, 4*q + 2*ks, V_A + 8*q, V_AV + 4*ks, nf=3)
            smf(3, 4*q + 2*ks + 1, V_A + 8*q + 4, V_AV + 4*ks, nf=3)
    fill += w_post(3)
    drain()
    stamp(7)
    H = V_QF
    def h1load(q):
        A(f'buffer_load_dwordx4 {vr(H+4*q,4)}, v{V_H1L}, {ws}, s{S_H1L+q} offen sc1')
    for q in range(4):
        h1load(q)
    t = V_TM
    stubs = []
    for q in range(4):
        chk = A.newlabel('h1c'); rt = A.newlabel('h1r')
        A(f's_waitcnt vmcnt({3-q})')
        A.label(chk, flush=False)
        b = H + 4*q
        if tag:
            A(f'v_bitop3_b32 v{t}, v{b}, v{b+1}, v{b+2} bitop3:0x80')
            A(f'v_bitop3_b32 v{t}, v{t}, v{b+3}, 1 bitop3:0x80')
            A(f'v_cmp_ne_u32 vcc, 1, v{t}')
        else:
            A(f'v_or3_b32 v{t}, v{b}, v{b+1}, v{b+2}')
            A(f'v_bitop3_b32 v{t}, v{t}, v{b+3}, 1 bitop3:0xa8')
            A(f'v_cmp_ne_u32 vcc, 0, v{t}')
        A(f's_cbranch_vccnz {rt}')
        stubs.append((rt, chk, q))
        if q >= 1:
            for i in range(4):
                A(f'v_add_f32 v{H+i}, v{H+i}, v{b+i}')
    stamp(8)
    A(f'''
    v_permlane32_swap_b32 v{H}, v{H+1}
    v_permlane32_swap_b32 v{H+2}, v{H+3}
    s_mov_b32 s{S_T0}, {par*8192}
    s_mov_b32 s{S_T1}, {(par^1)*8192}
    v_add_f32 v{H}, v{H}, v{H+1}
    v_add_f32 v{H+2}, v{H+2}, v{H+3}
    v_mov_b32 v{H+3}, -1
    s_mov_b32 s{S_T2}, {WS_X2 + par*8192 - L_ML}
    v_permlane16_swap_b32 v{H}, v{H+2}
    v_add_f32 v{H}, v{H}, v{H+2}
    s_mov_b32 s{S_T3}, {WS_X2 + par*8192 - L_ML + 4096}
    v_add_f32_dpp v{H}, v{H}, v{H} row_ror:8 row_mask:0xf bank_mask:0xf
    v_mov_b32 v{H+1}, v{H}
    v_permlane16_swap_b32 v{H}, v{H+1}
    v_cvt_pk_bf16_f32 v{H}, v{H}, v{H+1}
    v_min_u32 v{H}, -2, v{H}
    s_mov_b64 exec, s[{S_MSK}:{S_MSK+1}]
    buffer_store_dword v{H}, v{V_H2S}, {ws}, s{S_T0} offen{st}
    buffer_store_dword v{H+3}, v{V_H2S}, {ws}, s{S_T1} offen{st}
    s_mov_b64 exec, -1
    ''')
    stamp(9)
    sets = [V_A, V_A+8, V_A+16]
    def h2load(i):
        A(f'buffer_load_dwordx4 {vr(sets[i],4)}, v{V_MLW}, {ws}, s{S_T2} offen sc1')
        A(f'buffer_load_dwordx4 {vr(sets[i]+4,4)}, v{V_MLW}, {ws}, s{S_T3} offen sc1')
    for i in range(0, 16, 2):
        A(f'v_mov_b64 {vr(V_AQ+i,2)}, 0')
    if hooks and 'h2' in hooks:
        hooks['h2'](A)
    h2load(0); h2load(1); h2load(2)
    lp = A.newlabel('h2'); done = A.newlabel('h2done')
    oks = [A.newlabel('h2ok') for _ in range(3)]
    A.label(lp)
    for i in range(3):
        b = sets[i]
        if PROF[0]:
            A(f's_add_u32 s{S_MSK2+1}, s{S_MSK2+1}, 1')
        A('s_waitcnt vmcnt(4)')
        A(f'v_max3_u32 v{t}, v{b}, v{b+1}, v{b+2}')
        A(f'v_max3_u32 v{t}, v{t}, v{b+3}, v{b+4}')
        A(f'v_max3_u32 v{t}, v{t}, v{b+5}, v{b+6}')
        A(f'v_max_u32 v{t}, v{t}, v{b+7}')
        A(f'v_cmp_eq_u32 vcc, -1, v{t}')
        A(f's_cbranch_vccz {oks[i]}')
        h2load(i)
    A(f's_sub_u32 s{S_SPIN}, s{S_SPIN}, 1')
    A.br(f's_cbranch_scc0 {lp}')
    A.br(f's_branch L_abort')
    for rt, chk, q in stubs:
        A.label(rt)
        h1load(q)
        if PROF[0]:
            A(f's_add_u32 s{S_MSK2}, s{S_MSK2}, 1')
        A(f's_sub_u32 s{S_SPIN}, s{S_SPIN}, 1')
        A.br(f's_cbranch_scc1 L_abort')
        A('s_waitcnt vmcnt(0)')
        A.br(f's_branch {chk}')
    for i in range(3):
        A.label(oks[i])
        A(f'ds_write_b128 v{V_MLW}, {vr(sets[i],4)}')
        A(f'ds_write_b128 v{V_MLW}, {vr(sets[i]+4,4)} offset:4096')
        if i < 2:
            A.br(f's_branch {done}')
    A.label(done)
    A('s_waitcnt vmcnt(0)')
    L.q = []
    stamp(10)
```

```python
WS_BYTES = 268435456
WS_FLAGS = 0x0
WS_X1    = 0x300000
WS_X2    = 0x90000
WS_G     = 0xA0000
WS_MEMDBG= 0xB0000
WS_DUMP  = 0x200000
WS_KX    = 0x1000000
WS_VX    = 0x2000000
WS_QX    = 0x3000000
WS_KM    = 0x4100000
WS_VM    = 0x4A00000
WS_QA    = 0x5400000
WS_KA    = 0x5600000
WS_VA    = 0x5800000
WS_OC    = 0x6000000

L_WV = 0
L_KX = 131072
L_ML = 147456
L_Q  = 155648
L_K  = 157696
L_O  = 159744
L_END = 161792
LDS_BYTES = 163840

D_BITMAP = 0
D_XCC    = 1
D_READY  = 2
D_TICKET = 3
D_GATE   = 4
D_FIRST  = 5
D_PROG   = 32

F_G1   = 0x0000
F_AT   = 0x1000
F_BYTES = 0x5000
IT_K, IT_V, IT_Q, IT_AQ, IT_AK, IT_AV, IT_G = 0, 64, 128, 192, 200, 208, 216
N_G1 = 217
```

```python
from asmlib import *
from layout import *
from chain import *

S_IT = 57
S_A0, S_A1, S_A2, S_A3, S_A4, S_A5 = 60, 61, 62, 63, 64, 65
S_B0, S_B1, S_B2, S_B3 = 66, 67, 68, 69
S_SEG = 50

def lane_id(A, v):
    A(f'v_mbcnt_lo_u32_b32 v{v}, -1, 0')
    A(f'v_mbcnt_hi_u32_b32 v{v}, -1, v{v}')

def wait_gate(A):
    lp = A.newlabel('gate')
    A(f'v_mov_b32 v17, {D_GATE*4}')
    A.label(lp)
    A(f's_sub_u32 s{S_SPIN}, s{S_SPIN}, 1')
    A.br('s_cbranch_scc1 L_abort')
    A(f'''
    buffer_load_dword v16, v17, s[{R_DBG}:{R_DBG+3}], 0 offen sc1
    s_waitcnt vmcnt(0)
    v_readfirstlane_b32 s{S_T0}, v16
    s_cmp_eq_u32 s{S_T0}, 0
    ''')
    A.br(f's_cbranch_scc1 {lp}')

def g1_item(A):
    ws = f's[{R_WS}:{R_WS+3}]'
    vL, vG, vN, vT, vD, vTr, vX, vSt, vFl = 16, 17, 18, 19, 20, 21, 22, 23, 24
    lane_id(A, vL)
    A(f'''
    v_lshrrev_b32 v{vG}, 4, v{vL}
    v_and_b32 v{vN}, 15, v{vL}
    ''')
    lab = {k: A.newlabel('g1' + k) for k in ('v', 'q', 'aq', 'ak', 'av', 'g', 'dec')}
    A(f'v_lshlrev_b32 v{vSt}, 4, v{vL}')
    def btype(ptr, base, first, vtype):
        srd(A, R_W, ptr, 4 << 20)
        A(f'''
        s_mov_b32 s{S_A0}, 8192
        s_sub_u32 s{S_T0}, s{S_IT}, {first}
        s_lshl_b32 s{S_A1}, s{S_T0}, 7
        s_mov_b32 s{S_A2}, {vtype}
        s_lshr_b32 s{S_T1}, s{S_T0}, 1
        s_lshl_b32 s{S_T1}, s{S_T1}, 13
        s_and_b32 s{S_T2}, s{S_T0}, 1
        s_mov_b32 s{S_A4}, {32*8192}
        ''')
        if vtype == 0:
            A(f's_lshl_b32 s{S_T2}, s{S_T2}, 11')
            A(f's_add_u32 s{S_T1}, s{S_T1}, s{S_T2}')
            for p in range(2):
                for T in range(2):
                    A(f's_add_u32 s{S_B0+2*p+T}, s{S_T1}, {base + T*4096 + p*1024}')
        else:
            A(f's_lshl_b32 s{S_T2}, s{S_T2}, 12')
            A(f's_add_u32 s{S_T1}, s{S_T1}, s{S_T2}')
            for j in range(4):
                A(f's_add_u32 s{S_B0+j}, s{S_T1}, {base + j*1024}')
        A.br(f's_branch {lab["dec"]}')
    def atype(coloff, base, first, kind):
        srd(A, R_W, S_WQKV, 512 * 1536 * 2)
        A(f'''
        s_mov_b32 s{S_A0}, 3072
        s_sub_u32 s{S_T0}, s{S_IT}, {first}
        s_lshl_b32 s{S_A1}, s{S_T0}, 7
        s_add_u32 s{S_A1}, s{S_A1}, {coloff*2}
        s_mov_b32 s{S_A2}, {1 if kind == 'v' else 0}
        s_lshl_b32 s{S_T1}, s{S_T0}, 18
        s_mov_b32 s{S_A4}, 1024
        ''')
        if kind == 'v':
            for j in range(4):
                A(f's_add_u32 s{S_B0+j}, s{S_T1}, {base + j*65536}')
        else:
            A(f'''
            v_lshrrev_b32 v{vT}, 1, v{vG}
            v_lshlrev_b32 v{vSt}, 16, v{vT}
            v_and_b32 v{vT}, 1, v{vG}
            v_lshl_add_u32 v{vSt}, v{vT}, 9, v{vSt}
            v_and_b32 v{vT}, 3, v{vN}
            v_lshl_add_u32 v{vSt}, v{vT}, 4, v{vSt}
            ''')
            if kind == 'k':
                A(f'''
                v_lshrrev_b32 v{vT}, 3, v{vN}
                v_lshl_add_u32 v{vSt}, v{vT}, 8, v{vSt}
                v_bfe_u32 v{vT}, v{vN}, 2, 1
                v_lshl_add_u32 v{vSt}, v{vT}, 6, v{vSt}
                ''')
                tstep = 128
            else:
                A(f'''
                v_lshrrev_b32 v{vT}, 2, v{vN}
                v_lshl_add_u32 v{vSt}, v{vT}, 7, v{vSt}
                ''')
                tstep = 64
            for p in range(2):
                for T in range(2):
                    A(f's_add_u32 s{S_B0+2*p+T}, s{S_T1}, {base + p*2*65536 + T*tstep}')
        A.br(f's_branch {lab["dec"]}')
    A(f's_cmp_ge_u32 s{S_IT}, {IT_V}'); A.br(f's_cbranch_scc1 {lab["v"]}')
    btype(S_WK, WS_KX, IT_K, 0)
    A.label(lab['v'])
    A(f's_cmp_ge_u32 s{S_IT}, {IT_Q}'); A.br(f's_cbranch_scc1 {lab["q"]}')
    btype(S_WV, WS_VX, IT_V, 1)
    A.label(lab['q'])
    A(f's_cmp_ge_u32 s{S_IT}, {IT_AQ}'); A.br(f's_cbranch_scc1 {lab["aq"]}')
    btype(S_WQ, WS_QX, IT_Q, 0)
    A.label(lab['aq'])
    A(f's_cmp_ge_u32 s{S_IT}, {IT_AK}'); A.br(f's_cbranch_scc1 {lab["ak"]}')
    atype(0, WS_QA, IT_AQ, 'q')
    A.label(lab['ak'])
    A(f's_cmp_ge_u32 s{S_IT}, {IT_AV}'); A.br(f's_cbranch_scc1 {lab["av"]}')
    atype(512, WS_KA, IT_AK, 'k')
    A.label(lab['av'])
    atype(1024, WS_VA, IT_AV, 'v')
    A.label(lab['dec'])
    A(f'''
    v_lshrrev_b32 v{vT}, 3, v{vL}
    v_mul_lo_u32 v{vD}, v{vT}, s{S_A0}
    v_and_b32 v{vT}, 3, v{vT}
    v_lshlrev_b32 v{vT}, 1, v{vT}
    v_and_b32 v{vX}, 7, v{vL}
    v_xor_b32 v{vT}, v{vT}, v{vX}
    v_lshl_add_u32 v{vD}, v{vT}, 4, v{vD}
    v_add_u32 v{vD}, s{S_A1}, v{vD}
    s_mul_i32 s{S_T0}, s{S_W}, s{S_A0}
    s_lshl_b32 s{S_T0}, s{S_T0}, 3
    s_lshl_b32 s{S_T1}, s{S_A0}, 5
    s_lshl_b32 s{S_T2}, s{S_W}, 10
    ''')
    for i in range(16):
        A(f's_add_u32 m0, s{S_T2}, {i*4096}')
        A(f'buffer_load_dwordx4 v{vD}, s[{R_W}:{R_W+3}], s{S_T0} offen lds')
        A(f's_add_u32 s{S_T0}, s{S_T0}, s{S_T1}')
    vA = 28
    A(f'''
    v_bfe_u32 v{vT}, v{vL}, 2, 2
    v_lshl_add_u32 v{vTr}, v{vG}, 3, v{vT}
    v_lshlrev_b32 v{vTr}, 7, v{vTr}
    v_lshlrev_b32 v{vT}, 1, v{vT}
    v_and_b32 v{vX}, 3, v{vL}
    s_cmp_eq_u32 s{S_A2}, 0
    ''')
    lv = A.newlabel('trv'); ld = A.newlabel('trd')
    A.br(f's_cbranch_scc0 {lv}')
    for j in range(4):
        p, e = j >> 1, j & 1
        A(f'v_add_u32 v{vFl}, {4*p}, v{vX}')
        A(f'v_xor_b32 v{vFl}, v{vFl}, v{vT}')
        A(f'v_lshl_add_u32 v{vA+j}, v{vFl}, 4, v{vTr}')
        if e: A(f'v_add_u32 v{vA+j}, 8, v{vA+j}')
    A.br(f's_branch {ld}')
    A.label(lv)
    for j in range(4):
        A(f'v_lshrrev_b32 v{vFl}, 1, v{vX}')
        A(f'v_add_u32 v{vFl}, {2*j}, v{vFl}')
        A(f'v_xor_b32 v{vFl}, v{vFl}, v{vT}')
        A(f'v_lshl_add_u32 v{vA+j}, v{vFl}, 4, v{vTr}')
        A(f'v_and_b32 v{vFl}, 1, v{vX}')
        A(f'v_lshl_add_u32 v{vA+j}, v{vFl}, 3, v{vA+j}')
    A.label(ld)
    g1_common_x(A, vL, vG, vN, vT, vX, vFl)
    wait_gate_keep(A)
    A('s_waitcnt vmcnt(0)')
    A('s_barrier')
    for j in range(4):
        for ks in range(16):
            for rp in range(2):
                A(f'ds_read_b64_tr_b16 {ar((j*16+ks)*4 + 2*rp, 2)}, v{vA+j} offset:{(32*ks + 4*rp)*128}')
            if ks % 4 == 3:
                A('s_waitcnt lgkmcnt(0)')
    lv = A.newlabel('g1V'); le = A.newlabel('g1E')
    A(f's_cmp_eq_u32 s{S_A2}, 0')
    A.br(f's_cbranch_scc0 {lv}')
    g1_loop(A, 0, vX, vSt, vFl)
    A.br(f's_branch {le}')
    A.label(lv)
    g1_loop(A, 1, vX, vSt, vFl)
    A.label(le)

def wait_gate_keep(A):
    lp = A.newlabel('gate')
    A(f'v_mov_b32 v27, {D_GATE*4}')
    A.label(lp)
    A(f's_sub_u32 s{S_SPIN}, s{S_SPIN}, 1')
    A.br('s_cbranch_scc1 L_abort')
    A(f'''
    buffer_load_dword v26, v27, s[{R_DBG}:{R_DBG+3}], 0 offen sc1
    s_waitcnt vmcnt(0)
    v_readfirstlane_b32 s{S_T3}, v26
    s_cmp_eq_u32 s{S_T3}, 0
    ''')
    A.br(f's_cbranch_scc1 {lp}')

def g1_common_x(A, vL, vG, vN, vT, vX, vFl):
    A(f'''
    v_lshrrev_b32 v{vT}, 2, v{vN}
    v_lshlrev_b32 v{vX}, 13, v{vT}
    v_and_b32 v{vT}, 3, v{vN}
    v_lshl_add_u32 v{vX}, v{vT}, 10, v{vX}
    v_lshl_add_u32 v{vX}, v{vG}, 4, v{vX}
    s_lshl_b32 s{S_T0}, s{S_IT}, 4
    s_lshl_b32 s{S_T1}, s{S_W}, 2
    s_add_u32 s{S_T0}, s{S_T0}, s{S_T1}
    s_add_u32 s{S_T0}, s{S_T0}, {WS_FLAGS + F_G1}
    v_mov_b32 v{vFl}, s{S_T0}
    ''')

XR = 64
ACC = 32
OUTR = 192

def g1_loop(A, vtype, vX, vSt, vFl, gate=False):
    ws = f's[{R_WS}:{R_WS+3}]'; xs = f's[{R_X}:{R_X+3}]'
    def xload(T, ks, soff0, soff1):
        A(f'buffer_load_dwordx4 {vr(XR + (ks*2+T)*4, 4)}, v{vX}, {xs}, s{soff1 if T else soff0} offen offset:{ks*64}')
    A(f'''
    s_lshl_b32 s{S_A5}, s{S_W}, 15
    s_add_u32 s{S_A3}, s{S_A5}, 4096
    s_mov_b32 s{S_SEG}, 0
    s_mul_i32 s{S_T0}, s{S_W}, s{S_A4}
    ''')
    for i in range(4):
        A(f's_add_u32 s{S_B0+i}, s{S_B0+i}, s{S_T0}')
    A(f's_lshl_b32 s{S_A4}, s{S_A4}, 2')
    for ks in range(16):
        for T in range(2):
            xload(T, ks, S_A5, S_A3)
    for i in range(1 if gate else 4):
        A(f'buffer_load_dword v{OUTR+17}, v{vX}, {xs}, 0 offen')
    top = A.newlabel('g1top')
    A.label(top)
    A(f's_add_u32 s{S_A5}, s{S_A5}, {4*32768}')
    A(f's_add_u32 s{S_A3}, s{S_A3}, {4*32768}')
    NT = 1 if gate else 4
    NST = 1 if gate else 4
    for ks in range(16):
        n = 2*(15-ks) + NST + 2*ks + (1 if ks > 4 else 0)
        A(f's_waitcnt vmcnt({n})')
        for j in range(NT):
            for T in range(2):
                acc = ACC + (j*2+T)*4
                w = ar((j*16+ks)*4, 4); x = vr(XR + (ks*2+T)*4, 4)
                c = '0' if ks == 0 else vr(acc, 4)
                if vtype == 0:
                    A(f'v_mfma_f32_16x16x32_bf16 {vr(acc,4)}, {w}, {x}, {c}')
                else:
                    A(f'v_mfma_f32_16x16x32_bf16 {vr(acc,4)}, {x}, {w}, {c}')
        for T in range(2):
            xload(T, ks, S_A5, S_A3)
        if ks == 4:
            A('s_waitcnt vmcnt(10)')
            A(f'v_mov_b32 v{OUTR+16}, s{S_SEG}')
            A('s_mov_b64 exec, 1')
            A(f'buffer_store_dword v{OUTR+16}, v{vFl}, {ws}, 0 offen sc1')
            A('s_mov_b64 exec, -1')
    if gate:
        for T in range(2):
            a = ACC + T*4
            A(f'v_mul_f32 v{a}, 0xbfb8aa3b, v{a}')
            A(f'v_exp_f32 v{a}, v{a}')
            A(f'v_add_f32 v{a}, 1.0, v{a}')
            A(f'v_rcp_f32 v{OUTR+T}, v{a}')
        A('s_mov_b64 exec, 0xffff')
        A(f'buffer_store_dwordx2 {vr(OUTR,2)}, v{vSt}, {ws}, s{S_B0} offen sc1')
        A('s_mov_b64 exec, -1')
        A(f's_add_u32 s{S_B0}, s{S_B0}, s{S_A4}')
    else:
        for i in range(4):
            o = OUTR + 4*i
            if vtype == 0:
                p, T = i >> 1, i & 1
                a = ACC + ((2*p)*2+T)*4; b = ACC + ((2*p+1)*2+T)*4
                for k in range(4):
                    A(f'v_cvt_pk_bf16_f32 v{o+k}, v{a+k}, v{b+k}')
            else:
                a = ACC + (i*2)*4; b = ACC + (i*2+1)*4
                A(f'v_cvt_pk_bf16_f32 v{o}, v{a}, v{a+1}')
                A(f'v_cvt_pk_bf16_f32 v{o+1}, v{a+2}, v{a+3}')
                A(f'v_cvt_pk_bf16_f32 v{o+2}, v{b}, v{b+1}')
                A(f'v_cvt_pk_bf16_f32 v{o+3}, v{b+2}, v{b+3}')
            A(f'buffer_store_dwordx4 {vr(o,4)}, v{vSt}, {ws}, s{S_B0+i} offen sc1')
            A(f's_add_u32 s{S_B0+i}, s{S_B0+i}, s{S_A4}')
    A(f's_add_u32 s{S_SEG}, s{S_SEG}, 1')
    A(f's_cmp_lt_u32 s{S_SEG}, 16')
    A.br(f's_cbranch_scc1 {top}')
    A('s_waitcnt vmcnt(0)')
    A(f'v_mov_b32 v{OUTR+16}, 16')
    A('s_mov_b64 exec, 1')
    A(f'buffer_store_dword v{OUTR+16}, v{vFl}, {ws}, 0 offen sc1')
    A('s_mov_b64 exec, -1')

def gate_item(A):
    vL, vG, vN, vT, vD, vTr, vX, vSt, vFl = 16, 17, 18, 19, 20, 21, 22, 23, 24
    lane_id(A, vL)
    srd(A, R_W, S_GW, 1024)
    A(f'''
    v_lshrrev_b32 v{vG}, 4, v{vL}
    v_and_b32 v{vN}, 15, v{vL}
    v_lshlrev_b32 v{vD}, 4, v{vG}
    v_mov_b32 v{vT}, 0x100000
    v_cmp_eq_u32 vcc, 0, v{vN}
    v_cndmask_b32 v{vD}, v{vT}, v{vD}, vcc
    v_lshlrev_b32 v{vSt}, 3, v{vL}
    s_mov_b32 s{S_B0}, {WS_G}
    s_mov_b32 s{S_A4}, 128
    ''')
    for ks in range(16):
        A(f'buffer_load_dwordx4 {ar(ks*4,4)}, v{vD}, s[{R_W}:{R_W+3}], 0 offen offset:{ks*64}')
    g1_common_x(A, vL, vG, vN, vT, vX, vFl)
    wait_gate_keep(A)
    A('s_waitcnt vmcnt(0)')
    g1_loop(A, 0, vX, vSt, vFl, gate=True)

def poll_flags(A, vaddr, vthr, vtmp, sleep=2):
    ws = f's[{R_WS}:{R_WS+3}]'
    lp = A.newlabel('pf'); ok = A.newlabel('pfok')
    A.label(lp)
    A(f'buffer_load_dword v{vtmp}, v{vaddr}, {ws}, 0 offen sc1')
    A('s_waitcnt vmcnt(0)')
    A(f'v_cmp_lt_u32 vcc, v{vtmp}, v{vthr}')
    A.br(f's_cbranch_vccz {ok}')
    A(f's_sub_u32 s{S_SPIN}, s{S_SPIN}, 1')
    A.br('s_cbranch_scc1 L_abort')
    if sleep: A(f's_sleep {sleep}')
    A.br(f's_branch {lp}')
    A.label(ok)

def atb_item(A):
    ws = f's[{R_WS}:{R_WS+3}]'; dg = f's[{R_DBG}:{R_DBG+3}]'
    vL, vG, vN, vT, vAd, vTh, vL16, vGt = 16, 17, 18, 19, 20, 21, 22, 24
    QF, KF, VF, KM, VM = 32, 64, 96, 128, 144
    S = 160
    PX, PM = 184, 192
    ONES = 196
    LL = 200
    O = 208
    M, TT = 220, 221
    lane_id(A, vL)
    A(f'''
    v_lshrrev_b32 v{vG}, 4, v{vL}
    v_and_b32 v{vN}, 15, v{vL}
    v_lshlrev_b32 v{vL16}, 4, v{vL}
    ''')
    A(f'''
    v_lshrrev_b32 v{vT}, 1, v{vL}
    v_lshlrev_b32 v{vAd}, 6, v{vT}
    v_and_b32 v{vT}, 1, v{vL}
    v_add_u32 v{vAd}, v{vAd}, v{vT}
    s_lshl_b32 s{S_T0}, s{S_H}, 1
    v_add_u32 v{vAd}, s{S_T0}, v{vAd}
    v_mov_b32 v{vT}, {IT_G}
    v_cmp_gt_u32 vcc, 6, v{vL}
    v_cndmask_b32 v{vAd}, v{vT}, v{vAd}, vcc
    v_lshlrev_b32 v{vAd}, 4, v{vAd}
    s_and_b32 s{S_T0}, s{S_SEG}, 3
    s_lshl_b32 s{S_T0}, s{S_T0}, 2
    s_add_u32 s{S_T0}, s{S_T0}, {WS_FLAGS + F_G1}
    v_add_u32 v{vAd}, s{S_T0}, v{vAd}
    s_lshr_b32 s{S_T0}, s{S_SEG}, 2
    s_add_u32 s{S_T0}, s{S_T0}, 1
    v_mov_b32 v{vTh}, s{S_T0}
    ''')
    poll_flags(A, vAd, vTh, vT)
    A(f'''
    s_lshl_b32 s{S_T0}, s{S_SEG}, 5
    s_add_u32 s{S_T0}, s{S_T0}, s{S_H}
    s_lshl_b32 s{S_A0}, s{S_T0}, 13
    s_lshl_b32 s{S_A1}, s{S_T0}, 12
    s_add_u32 s{S_B0}, s{S_A0}, {WS_QX}
    s_add_u32 s{S_B1}, s{S_A0}, {WS_QX + 4096}
    s_add_u32 s{S_B2}, s{S_A0}, {WS_KX}
    s_add_u32 s{S_B3}, s{S_A0}, {WS_KX + 4096}
    ''')
    for T in range(2):
        for ks in range(4):
            A(f'buffer_load_dwordx4 {vr(QF+(T*4+ks)*4,4)}, v{vL16}, {ws}, s{S_B0+T} offen offset:{ks*1024} sc1')
            A(f'buffer_load_dwordx4 {vr(KF+(T*4+ks)*4,4)}, v{vL16}, {ws}, s{S_B2+T} offen offset:{ks*1024} sc1')
    A(f'''
    s_add_u32 s{S_B0}, s{S_A0}, {WS_VX}
    s_add_u32 s{S_B1}, s{S_A0}, {WS_VX + 4096}
    s_lshl_b32 s{S_T0}, s{S_SEG}, 7
    s_add_u32 s{S_T0}, s{S_T0}, {WS_G}
    v_lshlrev_b32 v{vT}, 3, v{vN}
    buffer_load_dwordx2 {vr(vGt,2)}, v{vT}, {ws}, s{S_T0} offen sc1
    ''')
    for j in range(8):
        A(f'buffer_load_dwordx4 {vr(VF+j*4,4)}, v{vL16}, {ws}, s{S_B0+(j>>2)} offen offset:{(j&3)*1024} sc1')
    for i in range(4):
        A(f'v_mov_b32 v{ONES+i}, 0x3f803f80')
    A('s_waitcnt vmcnt(9)')
    for Tq in range(2):
        for Tk in range(2):
            for ks in range(4):
                d = S + (Tq*3+Tk)*4
                A(f'v_mfma_f32_16x16x32_bf16 {vr(d,4)}, {vr(KF+(Tk*4+ks)*4,4)}, {vr(QF+(Tq*4+ks)*4,4)}, {"0" if ks == 0 else vr(d,4)}')
    lp = A.newlabel('cw'); ok = A.newlabel('cwok')
    A(f's_lshl_b32 s{S_T0}, s{S_H}, 2')
    A(f's_add_u32 s{S_T0}, s{S_T0}, {D_PROG*4}')
    A(f'v_mov_b32 v{vAd}, s{S_T0}')
    A.label(lp)
    A(f'buffer_load_dword v{vT}, v{vAd}, {dg}, 0 offen sc1')
    A('s_waitcnt vmcnt(0)')
    A(f'v_readfirstlane_b32 s{S_T0}, v{vT}')
    A(f's_cmp_gt_u32 s{S_T0}, s{S_SEG}')
    A.br(f's_cbranch_scc1 {ok}')
    A(f's_sub_u32 s{S_SPIN}, s{S_SPIN}, 1')
    A.br('s_cbranch_scc1 L_abort')
    A('s_sleep 4')
    A.br(f's_branch {lp}')
    A.label(ok)
    A(f's_add_u32 s{S_B0}, s{S_A1}, {WS_KM}')
    A(f's_add_u32 s{S_B1}, s{S_A1}, {WS_VM}')
    for ks in range(4):
        A(f'buffer_load_dwordx4 {vr(KM+ks*4,4)}, v{vL16}, {ws}, s{S_B0} offen offset:{ks*1024} sc1')
    for w in range(4):
        A(f'buffer_load_dwordx4 {vr(VM+w*4,4)}, v{vL16}, {ws}, s{S_B1} offen offset:{w*1024} sc1')
    A(f'''
    v_lshrrev_b32 v{vT}, 2, v{vN}
    v_sub_u32 v{vT}, v{vT}, v{vG}
    v_lshlrev_b32 v{vT}, 3, v{vT}
    v_and_b32 v{vTh}, 3, v{vN}
    v_add_u32 v{vT}, v{vT}, v{vTh}
    v_mov_b32 v{vTh}, 0xff800000
    ''')
    for Tq in range(2):
        for Tk in range(2):
            for i in range(4):
                d = S + (Tq*3+Tk)*4 + i
                A(f'v_cmp_gt_i32 vcc, {4*(Tk-Tq)+i}, v{vT}')
                A(f'v_cndmask_b32 v{d}, v{d}, v{vTh}, vcc')
    A('s_waitcnt vmcnt(4)')
    for Tq in range(2):
        for ks in range(4):
            d = S + (Tq*3+2)*4
            A(f'v_mfma_f32_16x16x32_bf16 {vr(d,4)}, {vr(KM+ks*4,4)}, {vr(QF+(Tq*4+ks)*4,4)}, {"0" if ks == 0 else vr(d,4)}')
    for Tq in range(2):
        b = S + Tq*12
        vals = [b+i for i in range(10)]
        A(f'v_max3_f32 v{M}, v{b}, v{b+1}, v{b+2}')
        A(f'v_max3_f32 v{M}, v{M}, v{b+3}, v{b+4}')
        A(f'v_max3_f32 v{M}, v{M}, v{b+5}, v{b+6}')
        A(f'v_max3_f32 v{M}, v{M}, v{b+7}, v{b+8}')
        A(f'v_max_f32 v{M}, v{M}, v{b+9}')
        A(f'v_mov_b32 v{TT}, v{M}')
        A(f'v_permlane32_swap_b32 v{TT}, v{M}')
        A(f'v_max_f32 v{M}, v{M}, v{TT}')
        A(f'v_mov_b32 v{TT}, v{M}')
        A(f'v_permlane16_swap_b32 v{TT}, v{M}')
        A(f'v_max_f32 v{M}, v{M}, v{TT}')
        A(f'v_mul_f32 v{M}, s{S_C}, v{M}')
        for r in vals:
            A(f'v_fma_f32 v{r}, v{r}, s{S_C}, -v{M}')
        for r in vals:
            A(f'v_exp_f32 v{r}, v{r}')
        for i in range(4):
            A(f'v_cvt_pk_bf16_f32 v{PX+Tq*4+i}, v{b+2*i}, v{b+2*i+1}')
        A(f'v_cvt_pk_bf16_f32 v{PM+Tq*2}, v{b+8}, v{b+9}')
        A(f'v_mov_b32 v{PM+Tq*2+1}, 0')
        A(f'v_mfma_f32_16x16x32_bf16 {vr(LL+Tq*4,4)}, {vr(ONES,4)}, {vr(PX+Tq*4,4)}, 0')
        A(f'v_mfma_f32_16x16x16_bf16 {vr(LL+Tq*4,4)}, {vr(ONES,2)}, {vr(PM+Tq*2,2)}, {vr(LL+Tq*4,4)}')
    A('s_waitcnt vmcnt(0)')
    for Tq in range(2):
        A(f'v_rcp_f32 v{LL+Tq*4}, v{LL+Tq*4}')
        A(f'v_sub_f32 v{vGt+Tq}, 1.0, v{vGt+Tq}')
        A(f'v_mul_f32 v{LL+Tq*4}, v{LL+Tq*4}, v{vGt+Tq}')
    A(f'''
    s_mul_i32 s{S_T0}, s{S_SEG}, {2*144*1024}
    s_lshl_b32 s{S_T1}, s{S_H}, 12
    s_add_u32 s{S_T0}, s{S_T0}, s{S_T1}
    s_add_u32 s{S_B0}, s{S_T0}, {WS_OC + 16*1024}
    s_add_u32 s{S_B1}, s{S_T0}, {WS_OC + 16*1024 + 144*1024}
    ''')
    k = 0
    for Tq in range(2):
        for jp in range(4):
            o = QF + (k % 4) * 12
            k += 1
            for e in range(2):
                j = 2*jp + e
                A(f'v_mfma_f32_16x16x32_bf16 {vr(o+4*e,4)}, {vr(VF+j*4,4)}, {vr(PX+Tq*4,4)}, 0')
            for e in range(2):
                A(f'v_mfma_f32_16x16x16_bf16 {vr(o+4*e,4)}, {vr(VM+jp*4+2*e,2)}, {vr(PM+Tq*2,2)}, {vr(o+4*e,4)}')
            for i in range(8):
                A(f'v_mul_f32 v{o+i}, v{o+i}, v{LL+Tq*4}')
            for i in range(4):
                A(f'v_cvt_pk_bf16_f32 v{o+8+i}, v{o+2*i}, v{o+2*i+1}')
            A(f'buffer_store_dwordx4 {vr(o+8,4)}, v{vL16}, {ws}, s{S_B0+Tq} offen offset:{jp*1024} sc1')
    A(f'''
    s_lshl_b32 s{S_T0}, s{S_SEG}, 8
    s_lshl_b32 s{S_T1}, s{S_H}, 2
    s_add_u32 s{S_T0}, s{S_T0}, s{S_T1}
    s_add_u32 s{S_T0}, s{S_T0}, {WS_FLAGS + F_AT}
    v_mov_b32 v{vAd}, s{S_T0}
    v_mov_b32 v{vT}, 1
    s_waitcnt vmcnt(0)
    s_mov_b64 exec, 1
    buffer_store_dword v{vT}, v{vAd}, {ws}, 0 offen sc1
    s_mov_b64 exec, -1
    ''')

S_CA = 58

def ata_item(A):
    ws = f's[{R_WS}:{R_WS+3}]'
    vL, vHi, vQ, vT, vAd, vTh, vL16, vGt, vVa, vNeg = 16, 17, 18, 19, 20, 21, 22, 23, 24, 25
    QF = 28
    KF = 32
    VF = 68
    S = 68
    O = 212
    P = 228
    M, TT = 236, 237
    lane_id(A, vL)
    A(f'''
    v_lshrrev_b32 v{vHi}, 5, v{vL}
    v_and_b32 v{vQ}, 31, v{vL}
    v_lshlrev_b32 v{vL16}, 4, v{vL}
    v_mov_b32 v{vNeg}, 0xff800000
    ''')
    A(f'''
    s_lshr_b32 s{S_T0}, s{S_H}, 2
    v_and_b32 v{vT}, 3, v{vL}
    v_sub_u32 v{vTh}, s{S_SEG}, v{vT}
    v_add_u32 v{vTh}, 4, v{vTh}
    v_lshrrev_b32 v{vTh}, 2, v{vTh}
    v_lshrrev_b32 v{vAd}, 2, v{vL}
    v_lshlrev_b32 v{vAd}, 3, v{vAd}
    v_add_u32 v{vAd}, {IT_AK}, v{vAd}
    v_add_u32 v{vAd}, s{S_T0}, v{vAd}
    v_lshlrev_b32 v{vAd}, 4, v{vAd}
    v_lshl_add_u32 v{vAd}, v{vT}, 2, v{vAd}
    s_and_b32 s{S_T1}, s{S_SEG}, 3
    s_lshl_b32 s{S_T1}, s{S_T1}, 2
    s_add_u32 s{S_T2}, s{S_T0}, {IT_AQ}
    s_lshl_b32 s{S_T2}, s{S_T2}, 4
    s_add_u32 s{S_T2}, s{S_T2}, s{S_T1}
    s_add_u32 s{S_T3}, s{S_T1}, {IT_G*16}
    s_lshr_b32 s{S_T1}, s{S_SEG}, 2
    s_add_u32 s{S_T1}, s{S_T1}, 1
    v_mov_b32 v{vT}, s{S_T3}
    v_cmp_lt_u32 vcc, 7, v{vL}
    v_cndmask_b32 v{vAd}, v{vAd}, v{vT}, vcc
    v_mov_b32 v{vT}, s{S_T1}
    v_cndmask_b32 v{vTh}, v{vTh}, v{vT}, vcc
    v_mov_b32 v{vT}, s{S_T2}
    v_cmp_eq_u32 vcc, 8, v{vL}
    v_cndmask_b32 v{vAd}, v{vAd}, v{vT}, vcc
    v_add_u32 v{vAd}, {WS_FLAGS + F_G1}, v{vAd}
    ''')
    poll_flags(A, vAd, vTh, vT)
    A(f'''
    s_lshl_b32 s{S_A0}, s{S_H}, 16
    s_lshl_b32 s{S_T0}, s{S_SEG}, 10
    s_add_u32 s{S_T0}, s{S_T0}, s{S_A0}
    s_add_u32 s{S_T0}, s{S_T0}, {WS_QA}
    buffer_load_dwordx4 {vr(QF,4)}, v{vL16}, {ws}, s{S_T0} offen sc1
    v_and_b32 v{vT}, 15, v{vL}
    v_lshlrev_b32 v{vVa}, 4, v{vT}
    v_lshl_add_u32 v{vVa}, v{vHi}, 8, v{vVa}
    ''')
    for b in range(9):
        A(f's_add_i32 s{S_T0}, s{S_SEG}, {b-8}')
        A(f's_max_i32 s{S_T0}, s{S_T0}, 0')
        A(f's_lshl_b32 s{S_T0}, s{S_T0}, 10')
        A(f's_add_u32 s{S_T0}, s{S_T0}, s{S_A0}')
        A(f's_add_u32 s{S_T1}, s{S_T0}, {WS_KA}')
        A(f'buffer_load_dwordx4 {vr(KF+4*b,4)}, v{vL16}, {ws}, s{S_T1} offen sc1')
        A(f's_add_u32 s{S_T1}, s{S_T0}, {WS_VA}')
        A(f'buffer_load_dwordx4 {ar(8*b,4)}, v{vVa}, {ws}, s{S_T1} offen sc1')
        A(f'buffer_load_dwordx4 {ar(8*b+4,4)}, v{vVa}, {ws}, s{S_T1} offen offset:512 sc1')
    A(f'''
    v_lshrrev_b32 v{vT}, 3, v{vQ}
    v_lshlrev_b32 v{vAd}, 5, v{vT}
    v_and_b32 v{vT}, 3, v{vQ}
    v_lshl_add_u32 v{vAd}, v{vT}, 3, v{vAd}
    v_and_b32 v{vT}, 4, v{vQ}
    v_add_u32 v{vTh}, v{vAd}, v{vT}
    s_lshl_b32 s{S_T0}, s{S_SEG}, 7
    s_add_u32 s{S_T0}, s{S_T0}, {WS_G}
    buffer_load_dword v{vGt}, v{vTh}, {ws}, s{S_T0} offen sc1
    ''')
    A(f'''
    v_lshlrev_b32 v{vAd}, 1, v{vAd}
    v_lshl_add_u32 v{vAd}, v{vHi}, 8, v{vAd}
    v_lshrrev_b32 v{vT}, 2, v{vT}
    s_mov_b32 s{S_T0}, {144*1024}
    v_mul_lo_u32 v{vT}, v{vT}, s{S_T0}
    v_add_u32 v{vAd}, v{vAd}, v{vT}
    s_waitcnt vmcnt(0)
    ''')
    for b in range(9):
        A(f'v_mfma_f32_32x32x16_bf16 {vr(S+16*b,16)}, {vr(KF+4*b,4)}, {vr(QF,4)}, 0')
    A(f'v_lshlrev_b32 v{vT}, 3, v{vHi}')
    A(f'v_sub_u32 v{vT}, v{vQ}, v{vT}')
    for r in range(16):
        a, i = r >> 2, r & 3
        kk = 16*(a >> 1) + 4*(a & 1) + i
        A(f'v_cmp_gt_i32 vcc, {kk}, v{vT}')
        A(f'v_cndmask_b32 v{S+r}, v{vNeg}, v{S+r}, vcc')
        A(f'v_cndmask_b32 v{S+128+r}, v{S+128+r}, v{vNeg}, vcc')
    for b in range(8):
        sk = A.newlabel('am')
        A(f's_cmp_ge_u32 s{S_SEG}, {8-b}')
        A.br(f's_cbranch_scc1 {sk}')
        for r in range(16):
            A(f'v_mov_b32 v{S+16*b+r}, v{vNeg}')
        A.label(sk)
    A(f'v_max3_f32 v{M}, v{S}, v{S+1}, v{S+2}')
    for r in range(3, 143, 2):
        A(f'v_max3_f32 v{M}, v{M}, v{S+r}, v{S+r+1}')
    A(f'v_max_f32 v{M}, v{M}, v{S+143}')
    A(f'v_mov_b32 v{TT}, v{M}')
    A(f'v_permlane32_swap_b32 v{TT}, v{M}')
    A(f'v_max_f32 v{M}, v{M}, v{TT}')
    A(f'v_mul_f32 v{M}, s{S_CA}, v{M}')
    A(f's_mov_b32 s{S_T0}, 0xffff0000')
    A(f's_mov_b32 s{S_T1}, 0xffff0000')
    A(f'v_mov_b32 v{vT}, 0x3f803f80')
    A(f's_mov_b64 exec, s[{S_T0}:{S_T1}]')
    for r in range(72):
        A(f'v_accvgpr_write_b32 a{r}, v{vT}')
    A('s_mov_b64 exec, -1')
    for b in range(9):
        sb = S + 16*b
        for r in range(16):
            A(f'v_fma_f32 v{sb+r}, v{sb+r}, s{S_CA}, -v{M}')
        for r in range(16):
            A(f'v_exp_f32 v{sb+r}, v{sb+r}')
        for r in range(8):
            A(f'v_cvt_pk_bf16_f32 v{sb+r}, v{sb+2*r}, v{sb+2*r+1}')
        A(f'v_mfma_f32_32x32x16_bf16 {vr(O,16)}, {ar(8*b,4)}, {vr(sb,4)}, {"0" if b == 0 else vr(O,16)}')
        A(f'v_mfma_f32_32x32x16_bf16 {vr(O,16)}, {ar(8*b+4,4)}, {vr(sb+4,4)}, {vr(O,16)}')
    A(f'v_rcp_f32 v{M}, v{O+8}')
    A(f'v_mul_f32 v{M}, v{M}, v{vGt}')
    for i in range(8):
        A(f'v_mul_f32 v{O+i}, v{O+i}, v{M}')
    for i in range(4):
        A(f'v_cvt_pk_bf16_f32 v{P+i}, v{O+2*i}, v{O+2*i+1}')
    A(f'''
    s_mul_i32 s{S_T0}, s{S_SEG}, {2*144*1024}
    s_lshr_b32 s{S_T1}, s{S_H}, 1
    s_lshl_b32 s{S_T1}, s{S_T1}, 10
    s_add_u32 s{S_T0}, s{S_T0}, s{S_T1}
    s_and_b32 s{S_T1}, s{S_H}, 1
    s_lshl_b32 s{S_T1}, s{S_T1}, 9
    s_add_u32 s{S_T0}, s{S_T0}, s{S_T1}
    s_add_u32 s{S_T0}, s{S_T0}, {WS_OC}
    buffer_store_dwordx4 {vr(P,4)}, v{vAd}, {ws}, s{S_T0} offen sc1
    s_lshl_b32 s{S_T0}, s{S_SEG}, 8
    s_lshl_b32 s{S_T1}, s{S_H}, 2
    s_add_u32 s{S_T0}, s{S_T0}, s{S_T1}
    s_add_u32 s{S_T0}, s{S_T0}, {WS_FLAGS + F_AT + 128}
    v_mov_b32 v{vAd}, s{S_T0}
    v_mov_b32 v{vT}, 1
    s_waitcnt vmcnt(0)
    s_mov_b64 exec, 1
    buffer_store_dword v{vT}, v{vAd}, {ws}, 0 offen sc1
    s_mov_b64 exec, -1
    ''')

G2_SETS = 4

def g2_role(A):
    ws = f's[{R_WS}:{R_WS+3}]'
    vL, vG, vN, vT, vD, vTa, vTb, vL16, vAd, vTh, vOut, vX = 16, 17, 18, 19, 20, 21, 22, 23, 24, 25, 26, 27
    def wf(kk, e, off=0, n=4):
        idx = kk*2 + e
        if idx < 64:
            return f'a[{idx*4+off}:{idx*4+off+n-1}]'
        b = 224 + (idx-64)*4 + off
        return f'v[{b}:{b+n-1}]'
    lane_id(A, vL)
    A(f'''
    v_lshrrev_b32 v{vG}, 4, v{vL}
    v_and_b32 v{vN}, 15, v{vL}
    v_lshlrev_b32 v{vL16}, 4, v{vL}
    s_and_b32 s{S_A0}, s{S_IT}, 15
    s_lshl_b32 s{S_A0}, s{S_A0}, 6
    ''')
    A(f'''
    v_lshrrev_b32 v{vT}, 2, v{vL}
    v_lshlrev_b32 v{vD}, 10, v{vT}
    v_and_b32 v{vT}, 3, v{vL}
    v_lshl_add_u32 v{vD}, v{vT}, 4, v{vD}
    v_add_u32 v{vD}, s{S_A0}, v{vD}
    s_mul_i32 s{S_A1}, s{S_W}, {36*1024}
    ''')
    A(f'''
    v_bfe_u32 v{vT}, v{vL}, 2, 2
    v_lshl_add_u32 v{vTb}, v{vG}, 2, v{vT}
    v_lshlrev_b32 v{vTb}, 6, v{vTb}
    v_lshrrev_b32 v{vX}, 1, v{vG}
    v_lshl_add_u32 v{vTa}, v{vX}, 4, v{vT}
    v_and_b32 v{vX}, 1, v{vG}
    v_lshl_add_u32 v{vTa}, v{vX}, 2, v{vTa}
    v_lshlrev_b32 v{vTa}, 6, v{vTa}
    v_and_b32 v{vT}, 3, v{vL}
    v_lshl_add_u32 v{vTa}, v{vT}, 4, v{vTa}
    v_lshl_add_u32 v{vTb}, v{vT}, 4, v{vTb}
    v_add_u32 v{vTa}, s{S_A1}, v{vTa}
    v_add_u32 v{vTb}, s{S_A1}, v{vTb}
    s_barrier
    ''')
    srd(A, R_W, S_WO, 4 << 20)
    R_W2 = R_X
    srd(A, R_W2, S_WO_A, 512*512*2)
    w0 = A.newlabel('g2w0'); wd = A.newlabel('g2wd')
    A(f's_cmp_eq_u32 s{S_W}, 0')
    A.br(f's_cbranch_scc1 {w0}')
    def load_pass(first_wave):
        if not first_wave:
            A(f's_mul_i32 s{S_T0}, s{S_W}, {36*32*1024}')
            A(f's_sub_u32 s{S_T0}, s{S_T0}, {16*32*1024}')
        for ps in range(2):
            for k2 in range(18):
                kk = ps*18 + k2
                for hf in range(2):
                    A(f's_add_u32 m0, s{S_A1}, {k2*2048 + hf*1024}')
                    if first_wave:
                        if kk < 16:
                            A(f's_mov_b32 s{S_T1}, {(kk*32 + hf*16)*1024}')
                            A(f'buffer_load_dwordx4 v{vD}, s[{R_W2}:{R_W2+3}], s{S_T1} offen lds')
                        else:
                            A(f's_mov_b32 s{S_T1}, {((kk-16)*32 + hf*16)*1024}')
                            A(f'buffer_load_dwordx4 v{vD}, s[{R_W}:{R_W+3}], s{S_T1} offen lds')
                    else:
                        A(f's_add_u32 s{S_T1}, s{S_T0}, {(kk*32 + hf*16)*1024}')
                        A(f'buffer_load_dwordx4 v{vD}, s[{R_W}:{R_W+3}], s{S_T1} offen lds')
            A('s_waitcnt vmcnt(0)')
            for k2 in range(18):
                kk = ps*18 + k2
                isA = first_wave and kk < 16
                for e in range(2):
                    for rp in range(2):
                        off = k2*2048 + e*8 + (rp*8*64 if isA else rp*16*64)
                        A(f'ds_read_b64_tr_b16 {wf(kk, e, 2*rp, 2)}, v{vTa if isA else vTb} offset:{off}')
                if k2 % 3 == 2:
                    A('s_waitcnt lgkmcnt(0)')
    load_pass(False)
    A.br(f's_branch {wd}')
    A.label(w0)
    load_pass(True)
    A.label(wd)
    A(f'''
    v_lshrrev_b32 v{vT}, 2, v{vN}
    v_lshlrev_b32 v{vOut}, 13, v{vT}
    v_and_b32 v{vT}, 3, v{vN}
    v_lshl_add_u32 v{vOut}, v{vT}, 10, v{vOut}
    v_lshl_add_u32 v{vOut}, v{vG}, 4, v{vOut}
    v_add_u32 v{vOut}, s{S_A0}, v{vOut}
    v_mov_b32 v{vTh}, 1
    s_lshr_b32 s{S_SEG}, s{S_IT}, 4
    s_lshl_b32 s{S_T0}, s{S_W}, 11
    v_lshlrev_b32 v{vX}, 1, v{vL16}
    v_add_u32 v{vTa}, s{S_T0}, v{vX}
    s_waitcnt lgkmcnt(0)
    s_barrier
    ''')
    B = 32
    ACC2 = 176
    RD = 184
    top = A.newlabel('g2top')
    A.label(top)
    A(f'''
    s_lshr_b32 s{S_T0}, s{S_SEG}, 1
    s_lshl_b32 s{S_T0}, s{S_T0}, 8
    s_add_u32 s{S_T0}, s{S_T0}, {WS_FLAGS + F_AT}
    v_lshlrev_b32 v{vAd}, 2, v{vL}
    v_add_u32 v{vAd}, s{S_T0}, v{vAd}
    ''')
    poll_flags(A, vAd, vTh, vT, sleep=2)
    A(f'''
    s_mul_i32 s{S_T0}, s{S_SEG}, {144*1024}
    s_add_u32 s{S_T0}, s{S_T0}, s{S_A1}
    s_add_u32 s{S_T0}, s{S_T0}, {WS_OC}
    ''')
    for kk in range(36):
        A(f'buffer_load_dwordx4 {vr(B+4*kk,4)}, v{vL16}, {ws}, s{S_T0} offen offset:{(kk&3)*1024} sc1')
        if kk & 3 == 3:
            A(f's_add_u32 s{S_T0}, s{S_T0}, 4096')
    for kk in range(36):
        A(f's_waitcnt vmcnt({35-kk})')
        for e in range(2):
            A(f'v_mfma_f32_16x16x32_bf16 {vr(ACC2+4*e,4)}, {wf(kk,e)}, {vr(B+4*kk,4)}, {"0" if kk == 0 else vr(ACC2+4*e,4)}')
    A(f'ds_write_b128 v{vTa}, {vr(ACC2,4)}')
    A(f'ds_write_b128 v{vTa}, {vr(ACC2+4,4)} offset:16')
    A('s_waitcnt lgkmcnt(0)')
    A('s_barrier')
    sk = A.newlabel('g2sk')
    A(f's_cmp_lg_u32 s{S_W}, 0')
    A.br(f's_cbranch_scc1 {sk}')
    for w in range(1, 4):
        A(f'ds_read_b128 {vr(RD+8*(w-1),4)}, v{vX} offset:{w*2048}')
        A(f'ds_read_b128 {vr(RD+8*(w-1)+4,4)}, v{vX} offset:{w*2048+16}')
    A('s_waitcnt lgkmcnt(0)')
    for i in range(8):
        A(f'v_add_f32 v{ACC2+i}, v{ACC2+i}, v{RD+i}')
        A(f'v_add_f32 v{RD+8+i}, v{RD+8+i}, v{RD+16+i}')
    for i in range(8):
        A(f'v_add_f32 v{ACC2+i}, v{ACC2+i}, v{RD+8+i}')
    for i in range(4):
        A(f'v_cvt_pk_bf16_f32 v{RD+i}, v{ACC2+2*i}, v{ACC2+2*i+1}')
    A(f'''
    s_lshr_b32 s{S_T0}, s{S_SEG}, 1
    s_lshl_b32 s{S_T0}, s{S_T0}, 15
    s_and_b32 s{S_T1}, s{S_SEG}, 1
    s_lshl_b32 s{S_T1}, s{S_T1}, 12
    s_add_u32 s{S_T0}, s{S_T0}, s{S_T1}
    buffer_store_dwordx4 {vr(RD,4)}, v{vOut}, s[{R_OUT}:{R_OUT+3}], s{S_T0} offen
    ''')
    A.label(sk)
    A('s_barrier')
    A(f's_add_u32 s{S_SEG}, s{S_SEG}, {G2_SETS}')
    A(f's_cmp_lt_u32 s{S_SEG}, 128')
    A.br(f's_cbranch_scc1 {top}')
```

```python
import sys
from asmlib import *
from layout import *
from chain import *
from workers import *

KN = 'gated_mix__sliding_block__memory_aug_recurrent_mem_tr__prompt_kernel'
HEADER = open('gated_mix__sliding_block__memory_aug_recurrent_mem_tr__prompt.s.ref').read().split('; Override launch')[0]

S_PEND = 51
S_RDY = 59
Q_G2 = N_G1
Q_ATA = Q_G2 + 16 * G2_SETS
N_ATA = 256
Q_ATB = Q_ATA + N_ATA
N_ATB = 512
Q_END = Q_ATB + N_ATB

def header(A):
    A.raw(HEADER.rstrip('\n'))
    A.raw(f'; @launch grid=(256,1,1) block=(256,1,1) lds={LDS_BYTES}')
    A.raw(f'''.amdgcn_target "amdgcn-amd-amdhsa--gfx950"
.text
.globl {KN}
.p2align 8
.type {KN},@function
{KN}:''')

def footer(A):
    A.raw(f'''.section .rodata,"a"
.p2align 6
.amdhsa_kernel {KN}
  .amdhsa_next_free_vgpr 512
  .amdhsa_next_free_sgpr 102
  .amdhsa_accum_offset 256
  .amdhsa_group_segment_fixed_size 0
  .amdhsa_kernarg_size 112
  .amdhsa_user_sgpr_count 2
  .amdhsa_user_sgpr_kernarg_segment_ptr 1
  .amdhsa_system_sgpr_workgroup_id_x 1
.end_amdhsa_kernel
''')

def wg_atomic(A, op, word, sval, sdst):
    sk = A.newlabel('at')
    A('s_barrier')
    A(f's_cmp_lg_u32 s{S_W}, 0')
    A.br(f's_cbranch_scc1 {sk}')
    A(f'''
    v_mov_b32 v16, {sval}
    v_mov_b32 v17, {word*4}
    s_mov_b64 exec, 1
    buffer_atomic_{op} v16, v17, s[{R_DBG}:{R_DBG+3}], 0 offen sc0
    s_waitcnt vmcnt(0)
    v_mov_b32 v17, {L_END}
    ds_write_b32 v17, v16
    s_mov_b64 exec, -1
    s_waitcnt lgkmcnt(0)
    ''')
    A.label(sk)
    A(f'''
    s_barrier
    v_mov_b32 v17, {L_END}
    ds_read_b32 v16, v17
    s_waitcnt lgkmcnt(0)
    v_readfirstlane_b32 s{sdst}, v16
    ''')

def kv_refresh(A, need_sgpr_plus):
    ws = f's[{R_WS}:{R_WS+3}]'
    ok = A.newlabel('kvok'); lp = A.newlabel('kvlp')
    t = V_QF
    A(f's_add_u32 s{S_T3}, s{S_STEP}, {need_sgpr_plus}')
    A(f's_cmp_lt_u32 s{S_T3}, s{S_RDY}')
    A.br(f's_cbranch_scc1 {ok}')
    lane_id(A, t+4)
    A(f'''
    v_and_b32 v{t+4}, 3, v{t+4}
    v_lshrrev_b32 v{t+5}, 1, v{t+4}
    v_lshlrev_b32 v{t+5}, 6, v{t+5}
    v_and_b32 v{t+4}, 1, v{t+4}
    v_add_u32 v{t+4}, v{t+4}, v{t+5}
    s_lshl_b32 s{S_T2}, s{S_H}, 1
    v_add_u32 v{t+4}, s{S_T2}, v{t+4}
    v_lshlrev_b32 v{t+4}, 4, v{t+4}
    ''')
    A.label(lp)
    A(f's_sub_u32 s{S_SPIN}, s{S_SPIN}, 1')
    A.br('s_cbranch_scc1 L_abort')
    A(f'''
    buffer_load_dwordx4 {vr(t,4)}, v{t+4}, {ws}, 0 offen offset:{WS_FLAGS + F_G1} sc1
    s_waitcnt vmcnt(0)
    v_lshlrev_b32 v{t}, 2, v{t}
    v_lshl_add_u32 v{t+1}, v{t+1}, 2, 1
    v_lshl_add_u32 v{t+2}, v{t+2}, 2, 2
    v_lshl_add_u32 v{t+3}, v{t+3}, 2, 3
    v_min3_u32 v{t}, v{t}, v{t+1}, v{t+2}
    v_min_u32 v{t}, v{t}, v{t+3}
    v_readlane_b32 s{S_RDY}, v{t}, 0
    v_readlane_b32 s{S_T2}, v{t}, 1
    s_min_u32 s{S_RDY}, s{S_RDY}, s{S_T2}
    v_readlane_b32 s{S_T2}, v{t}, 2
    s_min_u32 s{S_RDY}, s{S_RDY}, s{S_T2}
    v_readlane_b32 s{S_T2}, v{t}, 3
    s_min_u32 s{S_RDY}, s{S_RDY}, s{S_T2}
    s_cmp_lt_u32 s{S_T3}, s{S_RDY}
    ''')
    A.br(f's_cbranch_scc0 {lp}')
    A.label(ok)

def progress_store(A, sval_txt):
    dg = f's[{R_DBG}:{R_DBG+3}]'
    sk = A.newlabel('pg')
    A(f's_cmp_lg_u32 s{S_W}, 0')
    A.br(f's_cbranch_scc1 {sk}')
    A(f'''
    s_lshl_b32 s{S_T2}, s{S_H}, 2
    v_mov_b32 v{V_QF+8}, {sval_txt}
    v_mov_b32 v{V_QF+9}, {D_PROG*4}
    s_mov_b64 exec, 1
    buffer_store_dword v{V_QF+8}, v{V_QF+9}, {dg}, s{S_T2} offen sc1
    s_mov_b64 exec, -1
    ''')
    A.label(sk)

def chain_role(A):
    ws = f's[{R_WS}:{R_WS+3}]'; dg = f's[{R_DBG}:{R_DBG+3}]'
    chain_consts(A)
    A(f'''
    v_mov_b32 v16, -1
    v_mov_b32 v17, -1
    v_mov_b32 v18, -1
    v_mov_b32 v19, -1
    s_lshl_b32 s{S_T0}, s{S_H}, 14
    s_add_u32 s{S_T0}, s{S_T0}, {WS_X1 - L_ML}
    ''')
    for i in range(4):
        A(f'buffer_store_dwordx4 v[16:19], v{V_MLW}, {ws}, s{S_T0} offen sc1')
        A(f's_add_u32 s{S_T0}, s{S_T0}, 4096')
    A(f'''
    s_mov_b32 s{S_T1}, 8192
    s_mov_b64 exec, s[{S_MSK}:{S_MSK+1}]
    buffer_store_dword v16, v{V_H2S}, {ws}, 0 offen sc1
    buffer_store_dword v16, v{V_H2S}, {ws}, s{S_T1} offen sc1
    s_mov_b64 exec, -1
    s_waitcnt vmcnt(0)
    s_barrier
    ''')
    sk = A.newlabel('rdy')
    A(f's_cmp_lg_u32 s{S_W}, 0')
    A.br(f's_cbranch_scc1 {sk}')
    A(f'''
    s_lshl_b32 s{S_T0}, 1, s{S_XCC}
    v_mov_b32 v16, s{S_T0}
    v_mov_b32 v17, {D_XCC*4}
    s_mov_b64 exec, 1
    buffer_atomic_or v16, v17, {dg}, 0 offen sc0
    s_waitcnt vmcnt(0)
    v_mov_b32 v16, 1
    v_mov_b32 v17, {D_READY*4}
    buffer_atomic_add v16, v17, {dg}, 0 offen
    s_mov_b64 exec, -1
    ''')
    A.label(sk)
    A('s_waitcnt vmcnt(0)')
    chain_load_weights(A)
    wait_gate(A)
    A(f's_mov_b32 s{S_STEP}, 0')
    A(f's_mov_b32 s{S_RDY}, 0')
    kv_refresh(A, 0)
    srd(A, R_W, S_MEM0, 8192)
    A(f'''
    v_subrev_u32 v16, {L_ML}, v{V_MLW}
    v_lshrrev_b32 v16, 4, v16
    v_bfe_u32 v17, v16, 1, 3
    v_lshlrev_b32 v17, 10, v17
    v_lshrrev_b32 v18, 4, v16
    v_lshl_add_u32 v17, v18, 5, v17
    v_and_b32 v18, 1, v16
    v_lshl_add_u32 v17, v18, 4, v17
    buffer_load_dwordx4 v[20:23], v17, s[{R_W}:{R_W+3}], 0 offen
    buffer_load_dwordx4 v[24:27], v17, s[{R_W}:{R_W+3}], 0 offen offset:512
    s_lshl_b32 s{S_W1K}, s{S_W}, 10
    s_lshl_b32 s{S_T0}, s{S_W}, 11
    s_lshl_b32 s{S_KV}, s{S_H}, 13
    s_add_u32 s{S_KV}, s{S_KV}, s{S_T0}
    s_add_u32 s{S_KV}, s{S_KV}, {WS_KX - L_KX}
    s_lshl_b32 s{S_KM}, s{S_H}, 12
    s_add_u32 s{S_KM}, s{S_KM}, s{S_W1K}
    s_add_u32 s{S_KM}, s{S_KM}, {WS_KM - L_KX - 32*4096}
    s_add_u32 s{S_M0A}, s{S_T0}, {L_KX}
    s_add_u32 s{S_M0B}, s{S_T0}, {L_KX + 8192}
    s_mov_b32 m0, s{S_M0A}
    s_add_u32 s{S_T2}, s{S_KV}, {WS_VX - WS_KX}
    buffer_load_dwordx4 v{V_L}, {ws}, s{S_KV} offen sc1 lds
    buffer_load_dwordx4 v{V_L}, {ws}, s{S_KV} offen offset:1024 sc1 lds
    buffer_load_dwordx4 {vr(V_VX,4)}, v{V_L}, {ws}, s{S_T2} offen sc1
    buffer_load_dwordx4 {vr(V_VX+4,4)}, v{V_L}, {ws}, s{S_T2} offen offset:1024 sc1
    s_add_u32 s{S_KV}, s{S_KV}, {32*8192}
    s_mov_b32 s{S_T0}, 0x05040100
    s_mov_b32 s{S_T1}, 0x07060302
    ''')
    for u in range(2):
        for hf in range(2):
            b, off = lds_op_addr(u, hf)
            A(f'ds_read_b128 {vr(V_WR + 8*u + 4*hf, 4)}, v{b} offset:{off}')
    for i in range(16):
        A(f'v_mov_b32 v{V_AQ+i}, 0')
    A('s_waitcnt vmcnt(0)')
    for (src, dst) in [(20, V_AV), (24, V_AV+4)]:
        A(f'v_perm_b32 v{dst}, v{src+2}, v{src}, s{S_T0}')
        A(f'v_perm_b32 v{dst+1}, v{src+2}, v{src}, s{S_T1}')
        A(f'v_perm_b32 v{dst+2}, v{src+3}, v{src+1}, s{S_T0}')
        A(f'v_perm_b32 v{dst+3}, v{src+3}, v{src+1}, s{S_T1}')
    A(f'ds_write_b128 v{V_MLW}, {vr(V_AV,4)}')
    A(f'ds_write_b128 v{V_MLW}, {vr(V_AV+4,4)} offset:4096')
    lp = A.newlabel('rw')
    A(f'v_mov_b32 v18, {D_XCC*4}')
    A.label(lp)
    A(f's_sub_u32 s{S_SPIN}, s{S_SPIN}, 1')
    A.br(f's_cbranch_scc1 L_abort')
    A(f'''
    buffer_load_dword v17, v18, {dg}, 0 offen offset:4 sc1
    s_waitcnt vmcnt(0)
    v_readfirstlane_b32 s{S_T0}, v17
    s_cmp_lt_u32 s{S_T0}, 32
    ''')
    A.br(f's_cbranch_scc1 {lp}')
    A(f'''
    buffer_load_dword v16, v18, {dg}, 0 offen sc1
    s_waitcnt vmcnt(0)
    v_readfirstlane_b32 s{S_T0}, v16
    s_bcnt1_i32_b32 s{S_T0}, s{S_T0}
    s_cmp_eq_u32 s{S_T0}, 1
    ''')
    slow = A.newlabel('slow'); fin = A.newlabel('fin')
    if FORCE_SLOW:
        A.br(f's_branch {slow}')
    else:
        A.br(f's_cbranch_scc0 {slow}')
    def pre(A_):
        pass
    for fast in (1, 0):
        if not fast:
            A.label(slow)
        top = A.newlabel('steps')
        A.label(top)
        for par in (0, 1):
            kv_refresh(A, 1)
            chain_step(A, par, fast, hooks={'b1': lambda A_: progress_hook(A_)})
            A(f's_add_u32 s{S_STEP}, s{S_STEP}, 1')
            if par == 0:
                A(f's_cmp_eq_u32 s{S_STEP}, 63')
                A.br(f's_cbranch_scc1 {fin}')
        A.br(f's_branch {top}')
    A.label(fin)
    chain_step(A, 1, True, last=True, hooks={'b1': lambda A_: progress_hook(A_)})
    A('s_waitcnt vmcnt(0)')
    A('s_barrier')
    progress_store(A, '64')

def progress_hook(A):
    A(f's_sub_u32 s{S_T3}, s{S_STEP}, 1')
    A(f's_max_i32 s{S_T3}, s{S_T3}, 0')
    progress_store(A, f's{S_T3}')

FORCE_SLOW = False
FORCE_FALLBACK = False

def main(fn):
    A = Asm()
    header(A)
    A('s_cmp_ge_u32 s2, 256')
    A.br('s_cbranch_scc1 L_end')
    common_prologue(A)
    ws = f's[{R_WS}:{R_WS+3}]'; dg = f's[{R_DBG}:{R_DBG+3}]'
    A(f's_mov_b32 s{S_SPIN}, 0x40000')
    A(f's_mov_b32 s{S_PEND}, -1')
    A(f's_cmp_lg_u32 s{S_XCC}, 0')
    A.br('s_cbranch_scc1 L_worker')
    if FORCE_FALLBACK:
        A('s_bitcmp1_b32 s2, 4')
        A.br('s_cbranch_scc1 L_worker')
    A(f's_lshr_b32 s{S_H}, s2, 3')
    A(f's_and_b32 s{S_H}, s{S_H}, 31')
    A.label('L_claim')
    A(f's_lshl_b32 s{S_A0}, 1, s{S_H}')
    wg_atomic(A, 'or', D_BITMAP, f's{S_A0}', S_A1)
    A(f's_and_b32 s{S_T0}, s{S_A1}, s{S_A0}')
    A.br('s_cbranch_scc0 L_chain')
    A(f's_ff0_i32_b32 s{S_H}, s{S_A1}')
    A(f's_cmp_lt_i32 s{S_H}, 0')
    A.br('s_cbranch_scc0 L_claim')
    A.br('s_branch L_worker2')
    A.label('L_chain')
    lane_id(A, 0)
    A(f's_lshl_b32 s{S_T0}, s{S_W}, 6')
    A(f'v_add_u32 v0, s{S_T0}, v0')
    chain_role(A)
    A.label('L_worker2')
    srd(A, R_X, S_X, 2048 * 512 * 2)
    A(f's_cmp_eq_u32 s{S_PEND}, -1')
    A.br('s_cbranch_scc1 L_worker')
    A(f's_mov_b32 s{S_IT}, s{S_PEND}')
    A(f's_mov_b32 s{S_PEND}, -1')
    A.br('s_branch L_atb_go')
    A.label('L_worker')
    wg_atomic(A, 'add', D_TICKET, '1', S_IT)
    A(f's_cmp_ge_u32 s{S_IT}, {Q_END}')
    A.br('s_cbranch_scc1 L_end')
    A(f's_cmp_lg_u32 s{S_IT}, 0')
    A.br('s_cbranch_scc1 L_nozero')
    lane_id(A, 20)
    A(f'''
    s_lshl_b32 s{S_T0}, s{S_W}, 6
    v_add_u32 v20, s{S_T0}, v20
    v_lshlrev_b32 v20, 4, v20
    v_mov_b32 v16, 0
    v_mov_b32 v17, 0
    v_mov_b32 v18, 0
    v_mov_b32 v19, 0
    ''')
    for i in range(F_BYTES // 4096):
        A(f's_mov_b32 s{S_T0}, {WS_FLAGS + i*4096}')
        A(f'buffer_store_dwordx4 v[16:19], v20, {ws}, s{S_T0} offen sc1')
    A('s_waitcnt vmcnt(0)')
    A('s_barrier')
    A(f'''
    v_mov_b32 v16, 1
    v_mov_b32 v17, {D_GATE*4}
    s_mov_b64 exec, 1
    buffer_store_dword v16, v17, {dg}, 0 offen sc1
    s_mov_b64 exec, -1
    ''')
    A.label('L_nozero')
    A(f's_cmp_ge_u32 s{S_IT}, {IT_G}')
    A.br('s_cbranch_scc1 L_notg1')
    g1_item(A)
    A.br('s_branch L_worker')
    A.label('L_notg1')
    A(f's_cmp_lg_u32 s{S_IT}, {IT_G}')
    A.br('s_cbranch_scc1 L_notgate')
    gate_item(A)
    A.br('s_branch L_worker')
    A.label('L_notgate')
    wait_gate(A)
    A(f's_cmp_ge_u32 s{S_IT}, {Q_ATA}')
    A.br('s_cbranch_scc1 L_notg2')
    A(f's_sub_u32 s{S_IT}, s{S_IT}, {Q_G2}')
    g2_role(A)
    A.br('s_branch L_end')
    A.label('L_notg2')
    A(f's_cmp_ge_u32 s{S_IT}, {Q_ATB}')
    A.br('s_cbranch_scc1 L_atb')
    A(f'''
    s_sub_u32 s{S_IT}, s{S_IT}, {Q_ATA}
    s_lshr_b32 s{S_SEG}, s{S_IT}, 2
    s_and_b32 s{S_H}, s{S_IT}, 3
    s_lshl_b32 s{S_H}, s{S_H}, 3
    s_lshl_b32 s{S_T0}, s{S_W}, 1
    s_add_u32 s{S_H}, s{S_H}, s{S_T0}
    s_mov_b32 s{S_CA}, 0x3eb8aa3b
    ''')
    A.label('L_ata_loop')
    ata_item(A)
    A(f's_add_u32 s{S_H}, s{S_H}, 1')
    A(f's_bitcmp1_b32 s{S_H}, 0')
    A.br('s_cbranch_scc1 L_ata_loop')
    A.br('s_branch L_worker')
    A.label('L_atb')
    wg_atomic(A, 'or', D_BITMAP, '0', S_A1)
    A(f's_ff0_i32_b32 s{S_H}, s{S_A1}')
    A(f's_cmp_lt_i32 s{S_H}, 0')
    A.br('s_cbranch_scc1 L_atb_go')
    A(f's_mov_b32 s{S_PEND}, s{S_IT}')
    A.br('s_branch L_claim')
    A.label('L_atb_go')
    A(f'''
    s_sub_u32 s{S_IT}, s{S_IT}, {Q_ATB}
    s_lshr_b32 s{S_SEG}, s{S_IT}, 3
    s_and_b32 s{S_H}, s{S_IT}, 7
    s_lshl_b32 s{S_H}, s{S_H}, 2
    s_add_u32 s{S_H}, s{S_H}, s{S_W}
    s_mov_b32 s{S_C}, 0x3e0293ee
    ''')
    atb_item(A)
    A.br('s_branch L_worker')
    A.label('L_abort')
    A.label('L_end')
    A('s_endpgm')
    footer(A)
    open(fn, 'w').write(A.text())
    print(len(A.lines), 'lines')

if __name__ == '__main__':
    if 'slow' in sys.argv: FORCE_SLOW = True
    if 'fallback' in sys.argv: FORCE_FALLBACK = True
    main(sys.argv[1])
```
